```python
import torch

def _softmax(x, axis=-1):
    return torch.softmax(x, dim=axis)
def _gelu(x):
    return torch.nn.functional.gelu(x, approximate="tanh")
def _silu(x):
    return torch.nn.functional.silu(x)
def _sigmoid(x):
    return torch.sigmoid(x)
def _layernorm(x, axis=-1, eps=1e-5):
    m = x.mean(dim=axis, keepdim=True)
    v = x.var(dim=axis, keepdim=True, unbiased=False)
    return (x - m) / torch.sqrt(v + eps)
def _scatter_add(tgt, idx, src, axis=0):
    return tgt.clone().index_add_(axis, idx, src)
def _segment_sum(src, seg, n):
    out = torch.zeros((n,) + src.shape[1:], dtype=src.dtype)
    return out.index_add_(0, seg, src)
def _pad(x, pw):
    flat = tuple(v for pair in reversed(pw) for v in pair)
    return torch.nn.functional.pad(x, flat)

kernel_name = 'parallel_sum__sliding_block_cached__dense_activation_gelu__decode'

def setup_inputs():

    _w = (lambda a: (lambda t: t.to(torch.bfloat16) if t.is_floating_point() else t)(torch.as_tensor(a)))
    def _A_setup():
        B, Sq, D = 1, 1, 512
        Hq, Hkv, Sk, Dh = 32, 8, 65536, 128
        assert Hq % Hkv == 0, (Hq, Hkv)
        return {
            "x": _w((lambda *s: torch.randn(*s, dtype=torch.bfloat16) * 0.05)(B, Sq, D)),
            "k_cache": _w((lambda *s: torch.randn(*s, dtype=torch.bfloat16) * 1.6)(B, Hkv, Sk, Dh)),
            "v_cache": _w((lambda *s: torch.randn(*s, dtype=torch.bfloat16) * 0.8)(B, Hkv, Sk, Dh)),
            "wq": _w((lambda *s: torch.randn(*s, dtype=torch.bfloat16) * 1.6)(D, Hq * Dh) * (D ** -0.5)),
            "wo": _w((lambda *s: torch.randn(*s, dtype=torch.bfloat16) * 0.8)(Hq * Dh, D) * ((Hq * Dh) ** -0.5)),
        }
    _A_in = _A_setup()

    def _B_setup():
        B, S, D, F = 1, 1, 512, 1792
        return {
            "x": _w((lambda *s: torch.randn(*s, dtype=torch.bfloat16) * 0.05)(B, S, D)),
            "w1": _w((lambda *s: torch.randn(*s, dtype=torch.bfloat16) * 0.4)(D, F) * (D ** -0.5)),
            "b1": _w((lambda *s: torch.randn(*s, dtype=torch.bfloat16) * 0.4)(F) * 0.01),
            "w2": _w((lambda *s: torch.randn(*s, dtype=torch.bfloat16) * 0.4)(F, D) * (F ** -0.5)),
            "b2": _w((lambda *s: torch.randn(*s, dtype=torch.bfloat16) * 0.4)(D) * 0.01),
        }
    _B_in = _B_setup()

    return {
        "A_x": _A_in["x"],
        "A_k_cache": _A_in["k_cache"],
        "A_v_cache": _A_in["v_cache"],
        "A_wq": _A_in["wq"],
        "A_wo": _A_in["wo"],
        "B_x": _B_in["x"],
        "B_w1": _B_in["w1"],
        "B_b1": _B_in["b1"],
        "B_w2": _B_in["w2"],
        "B_b2": _B_in["b2"],
    }

def reference(A_x, A_k_cache, A_v_cache, A_wq, A_wo, B_x, B_w1, B_b1, B_w2, B_b2):
    def _A_ref(x, k_cache, v_cache, wq, wo):
        B, Sq, D = x.shape
        Hq, Dh = 32, 128
        Hkv, Sk = k_cache.shape[1], k_cache.shape[2]
        W = min(4096, max(256, Sk // 4))
        rep = Hq // Hkv
        q = (lambda x, *d: x.permute(*d))((x @ wq).reshape(B, Sq, Hq, Dh), 0, 2, 1, 3)
        k = (lambda x, n, axis: torch.repeat_interleave(x, n, dim=axis))(k_cache[:, :, Sk - W:, :], rep, axis=1)
        v = (lambda x, n, axis: torch.repeat_interleave(x, n, dim=axis))(v_cache[:, :, Sk - W:, :], rep, axis=1)
        scores = torch.einsum("bhqd,bhkd->bhqk", q, k) * (Dh ** -0.5)
        p = _softmax(scores, axis=-1)
        o = torch.einsum("bhqk,bhkd->bhqd", p, v)
        return (lambda x, *d: x.permute(*d))(o, 0, 2, 1, 3).reshape(B, Sq, Hq * Dh) @ wo

    def _B_ref(x, w1, b1, w2, b2):
        h = torch.einsum("bsd,df->bsf", x, w1) + b1
        h = _gelu(h)
        return torch.einsum("bsf,fd->bsd", h, w2) + b2

    x = A_x
    xn = _layernorm(x, axis=-1)
    return x + _A_ref(xn, A_k_cache, A_v_cache, A_wq, A_wo) + _B_ref(xn, B_w1, B_b1, B_w2, B_b2)
```

```python
NAME = "parallel_sum__sliding_block_cached__dense_activation_gelu__decode"
HEADER = """; Kernarg layout for this problem (104 bytes, ptrs only, base s[0:1]):
"""
class Asm:
    def __init__(self):
        self.lines = []
    def __call__(self, s):
        for l in s.strip("\n").split("\n"):
            self.lines.append("    " + l.strip() if not l.strip().endswith(":") else l.strip())
    def label(self, l): self.lines.append(l + ":")
    def text(self): return "\n".join(self.lines) + "\n"

def kernel_file(kernels, launches):
    out = HEADER
    if len(launches) == 1 and launches[0][0] == NAME + "_kernel":
        _, g, b, lds = launches[0]
        out += f"; @launch grid=({g[0]},{g[1]},{g[2]}) block=({b[0]},{b[1]},{b[2]}) lds={lds}\n"
    else:
        for lab, g, b, lds in launches:
            out += f"; @launch kernel={lab} grid=({g[0]},{g[1]},{g[2]}) block=({b[0]},{b[1]},{b[2]}) lds={lds}\n"
    out += '.amdgcn_target "amdgcn-amd-amdhsa--gfx950"\n.text\n'
    for lab, body, *_ in kernels:
        out += f".globl {lab}\n.p2align 8\n.type {lab},@function\n{lab}:\n{body}"
    out += '.section .rodata,"a"\n'
    for lab, body, vgpr, sgpr, acc in kernels:
        out += f""".p2align 6
.amdhsa_kernel {lab}
  .amdhsa_next_free_vgpr {vgpr}
  .amdhsa_next_free_sgpr {sgpr}
  .amdhsa_accum_offset {acc}
  .amdhsa_group_segment_fixed_size 0
  .amdhsa_kernarg_size 104
  .amdhsa_user_sgpr_count 2
  .amdhsa_user_sgpr_kernarg_segment_ptr 1
  .amdhsa_system_sgpr_workgroup_id_x 1
  .amdhsa_float_denorm_mode_32 3
  .amdhsa_ieee_mode 0
  .amdhsa_dx10_clamp 0
.end_amdhsa_kernel
"""
    return out
```

```python
import re
TRANS = ("v_exp_f32", "v_log_f32", "v_rcp_f32", "v_rsq_f32", "v_sqrt_f32", "v_sin_f32", "v_cos_f32")
def regs(tok):
    tok = tok.strip()
    neg = tok.lstrip("-")
    if neg.startswith("abs(") or neg.startswith("|"): neg = neg.strip("abs()|")
    m = re.fullmatch(r"([vsa])\[(\d+):(\d+)\]", neg)
    if m: return {(m.group(1), i) for i in range(int(m.group(2)), int(m.group(3)) + 1)}
    m = re.fullmatch(r"([vsa])(\d+)", neg)
    if m: return {(m.group(1), int(m.group(2)))}
    if neg in ("vcc", "vcc_lo", "vcc_hi"): return {("s", "vcc")}
    if neg == "m0": return {("s", "m0")}
    if neg in ("exec", "exec_lo", "exec_hi"): return {("s", "exec")}
    return set()
class I:
    def __init__(self, text):
        self.text = text
        t = text.split(";")[0].strip()
        self.label = t.endswith(":")
        self.mn = t.split()[0] if t else ""
        rest = t[len(self.mn):].strip()
        toks = [x.strip() for x in rest.split(",")] if rest else []
        mods = ""
        if toks:
            last = toks[-1].split()
            if last:
                toks[-1] = last[0]; mods = " ".join(last[1:])
        self.toks, self.mods = toks, mods
        mn = self.mn
        self.mfma = mn.startswith("v_mfma")
        self.valu = mn.startswith("v_") and not self.mfma
        self.ds = mn.startswith("ds_")
        self.vmem = mn.startswith(("global_", "buffer_"))
        self.dpp = "_dpp" in mn or "row_" in mods or "quad_perm" in mods
        self.trans = mn.replace("_e32", "").replace("_e64", "") in TRANS
        self.perm = mn.startswith("v_permlane")
        self.rdlane = mn.startswith(("v_readlane", "v_readfirstlane"))
        R = [regs(x) for x in toks]
        w, r = set(), set()
        if self.valu or self.mfma:
            w |= R[0] if R else set()
            for x in R[1:]: r |= x
            if mn.startswith(("v_fmac", "v_mac", "v_dot2c")) or self.dpp or mn.startswith("v_writelane"): r |= R[0]
            if self.perm: w |= R[1]; r |= R[0]
            if mn.startswith(("v_add_co", "v_sub_co", "v_addc_co")): w |= R[1]; r -= R[1] if not mn.startswith("v_addc") else set()
            if mn.startswith("v_cndmask") and len(toks) == 3: r |= {("s", "vcc")}
        elif self.ds:
            if mn.startswith(("ds_read", "ds_bpermute", "ds_permute", "ds_swizzle")):
                w |= R[0]
                for x in R[1:]: r |= x
            else:
                for x in R: r |= x
        elif self.vmem:
            if "load" in mn and "lds" not in mn and "lds" not in mods.split():
                w |= R[0]
                for x in R[1:]: r |= x
            else:
                for x in R: r |= x
                if "lds" in mn or "lds" in mods.split(): r |= {("s", "m0")}
        elif mn.startswith("s_") and R:
            if mn.startswith(("s_cmp", "s_cbranch", "s_waitcnt", "s_bitcmp")):
                for x in R: r |= x
            else:
                w |= R[0]
                for x in R[1:]: r |= x
        self.w, self.r = w, r
        self.srcC = R[3] if self.mfma and len(R) > 3 else set()
        self.srcAB = (R[1] | R[2]) if self.mfma else set()
        self.passes = 0
        if self.mfma:
            self.passes = 8 if ("32x32x16" in mn or "16x16x4_f32" in mn) else 4
        self.bigstore = self.vmem and "store" in mn and ("x2" in mn or "x3" in mn or "x4" in mn)
        self.states = 1
        if mn == "s_nop": self.states = int(toks[0]) + 1
        if self.label or not mn: self.states = 0

def need(p, c):
    n = 0
    pv = {x for x in p.w if x[0] in "va"}; ps = {x for x in p.w if x[0] == "s"}
    if p.valu:
        if c.dpp and c.valu and (pv & c.r): n = max(n, 2)
        if c.perm and (pv & (c.r | c.w)): n = max(n, 2)
        if c.mfma and (pv & c.r): n = max(n, 2)
        if c.rdlane and (pv & c.r): n = max(n, 1)
        if p.trans and c.valu and (pv & c.r): n = max(n, 1)
        if ps:
            if c.valu and (ps & c.r): n = max(n, 4 if c.rdlane or c.mn.startswith("v_writelane") else 2)
            if c.vmem and (ps & c.r): n = max(n, 5)
    if p.mfma:
        d = 8 if p.passes == 4 else 12
        if p.mn.endswith("_f32") and "bf16" not in p.mn: d = 10
        if c.mfma:
            if pv & c.srcAB: n = max(n, d)
            if pv & c.srcC and not (pv == c.srcC and p.mn == c.mn): n = max(n, d - 2)
            if (pv & c.w) and not (pv & c.srcC): n = max(n, d)
        elif (c.valu or c.ds or c.vmem) and (pv & (c.r | c.w)): n = max(n, d)
        if c.valu and (p.srcC & c.w): n = max(n, 3 if p.passes == 4 else 7)
    if p.mn.startswith("s_") and ("s", "m0") in p.w and c.vmem and ("s", "m0") in c.r: n = max(n, 1)
    if p.bigstore and c.valu and c.w:
        data = regs(p.toks[1])
        if data & c.w: n = max(n, 2)
    return n

def fix(text):
    out = []; hist = []; inserted = 0
    for line in text.split("\n"):
        s = line.strip()
        if not s or s.startswith((";", ".")): out.append(line); continue
        c = I(s)
        if c.label: out.append(line); continue
        dist = 0; req = 0
        for p in reversed(hist):
            req = max(req, need(p, c) - dist)
            dist += p.states
            if dist > 20: break
        if req > 0:
            nop = I(f"s_nop {req-1}"); hist.append(nop); out.append(f"    s_nop {req-1}"); inserted += req
        hist.append(c); out.append(line)
        if c.mn in ("s_branch", "s_endpgm"): pass
    return "\n".join(out), inserted
```

```python
import sys
sys.path.insert(0, "tools")
from asmgen import *
import hazard

WS_EPOCH = 0
WS_Q1 = 0x10000
WS_H1 = 0x20000
WS_ML = 0x30000
WS_O2 = 0x40000
WS_O3 = 0xC0000
WS_STAMP = 0x10000000
KB, VB, WQB, W1B, WOB, W2B = 0, 32768, 65536, 81920, 90112, 106496
XN = 114688
QL = 118784
MX = 120064
AL = 120128
PL = 120320
LDS_BYTES = 124416

class Gen:
    def __init__(self, **o):
        self.o = dict(nt=True, stamps=False, wo_pos="early", sleep2=1, sleep3=1, out_sc1=True, dump=None, codepf=False, maxpoll=1 << 17)
        self.o.update(o)
        self.a = Asm()
        self.nv = 0
        self.names = {}
        self.vm = []
        self.nstamp = 0
        self.stamp_names = []
    def v(self, name, n=1, align=1):
        if n > 1: align = max(align, 2)
        self.nv = (self.nv + align - 1) // align * align
        r = self.nv; self.nv += n
        self.names[name] = (r, n)
        return r
    def vr(self, r, n): return f"v[{r}:{r+n-1}]"
    def issue(self, name, text, sure=True):
        self.a(text); self.vm.append((name, sure))
    def wait(self, *names, extra=""):
        idx = max(i for i, (n, s) in enumerate(self.vm) if n in names)
        n = sum(1 for (nm, s) in self.vm[idx + 1:] if s)
        self.a(f"s_waitcnt vmcnt({n}){extra}")
        self.vm = self.vm[idx + 1:]
    def stamp(self, name):
        if not self.o["stamps"]: return
        i = self.nstamp; self.nstamp += 1; self.stamp_names.append(name)
        self.a(f"s_memtime s[{60+2*i}:{61+2*i}]")

    def build(self):
        a, o, v, vr = self.a, self.o, self.v, self.vr
        NT = " nt" if o["nt"] else ""
        v0 = v("tid")
        if o["stamps"]:
            a("s_memrealtime s[56:57]")
            self.stamp("start")
        a("s_cmp_ge_u32 s2, 256")
        a("s_cbranch_scc1 L_end")
        a("s_load_dwordx16 s[4:19], s[0:1], 0")
        a("s_load_dwordx8 s[20:27], s[0:1], 64")
        a("s_load_dwordx2 s[28:29], s[0:1], 96")
        vl, vb, vj = v("l"), v("b"), v("j")
        t0, t1, t2, t3 = v("t0"), v("t1"), v("t2"), v("t3")
        a(f"v_lshrrev_b32 v{t0}, 6, v0")
        a(f"v_and_b32 v{vl}, 63, v0")
        a(f"v_readfirstlane_b32 s32, v{t0}")
        a(f"v_lshrrev_b32 v{vb}, 4, v{vl}")
        a(f"v_and_b32 v{vj}, 15, v0")
        a("s_and_b32 s30, s2, 7")
        a("s_lshr_b32 s31, s2, 3")
        a("s_mov_b32 s40, 0xff")
        vK = v("vK", 4); vV = v("vV", 2); vWQ = v("vWQ"); vW1 = v("vW1"); vWO = v("vWO", 2); vl16 = v("l16")
        a(f"v_xor_b32 v{t0}, v{vj}, v{vb}")
        a(f"v_lshlrev_b32 v{t0}, 4, v{t0}")
        a(f"v_lshl_or_b32 v{vK}, v{vb}, 8, v{t0}")
        for n in range(1, 4): a(f"v_xor_b32 v{vK+n}, {64*n}, v{vK}")
        a(f"v_lshlrev_b32 v{t1}, 1, v{vb}")
        a(f"v_xor_b32 v{t2}, v{vj}, v{t1}")
        a(f"v_lshlrev_b32 v{t2}, 4, v{t2}")
        a(f"v_lshl_or_b32 v{vV}, v{vb}, 8, v{t2}")
        a(f"v_xor_b32 v{vV+1}, 0x80, v{vV}")
        a(f"v_lshl_or_b32 v{vWO}, v{vb}, 10, v{t2}")
        a(f"v_xor_b32 v{vWO+1}, 0x80, v{vWO}")
        a(f"v_and_b32 v{t2}, 7, v{vl}")
        a(f"v_xor_b32 v{t2}, v{t2}, v{t1}")
        a(f"v_lshlrev_b32 v{t2}, 4, v{t2}")
        a(f"v_lshrrev_b32 v{t3}, 3, v{vl}")
        a(f"v_lshl_or_b32 v{vWQ}, v{t3}, 13, v{t2}")
        a(f"v_mul_u32_u24 v{t3}, 3584, v{t3}")
        a(f"v_add_u32 v{vW1}, v{t3}, v{t2}")
        a(f"v_lshlrev_b32 v{vl16}, 4, v{vl}")
        a("s_lshr_b32 s33, s31, 2"); a("s_lshl_b32 s34, s30, 3"); a("s_add_u32 s41, s33, s34")
        a("s_and_b32 s42, s31, 3")
        a("s_min_u32 s43, s41, 55")
        a("s_lshl_b32 s33, s30, 24"); a("s_lshl_b32 s34, s31, 15"); a("s_add_u32 s33, s33, s34"); a(f"s_add_u32 s33, s33, {61440*256}")
        a("s_lshl_b32 s34, s32, 13"); a("s_add_u32 s44, s33, s34")
        a("s_lshl_b32 s34, s32, 11"); a("s_add_u32 s45, s33, s34")
        a("s_lshr_b32 s33, s31, 3"); a("s_lshl_b32 s33, s33, 20"); a("s_lshl_b32 s34, s32, 18"); a("s_add_u32 s33, s33, s34")
        a("s_lshl_b32 s34, s30, 10"); a("s_add_u32 s33, s33, s34"); a("s_and_b32 s34, s31, 7"); a("s_lshl_b32 s34, s34, 7"); a("s_add_u32 s46, s33, s34")
        a("s_lshl_b32 s33, s30, 2"); a("s_add_u32 s33, s33, s32"); a(f"s_mul_i32 s33, s33, {16*3584}")
        a("s_min_u32 s34, s31, 27"); a("s_lshl_b32 s34, s34, 7"); a("s_add_u32 s47, s33, s34")
        a("s_lshl_b32 s33, s41, 2"); a("s_add_u32 s33, s33, s32"); a("s_lshl_b32 s33, s33, 14"); a("s_lshl_b32 s34, s42, 8"); a("s_add_u32 s48, s33, s34")
        a("s_lshl_b32 s33, s43, 2"); a("s_add_u32 s33, s33, s32"); a("s_lshl_b32 s33, s33, 13"); a("s_add_u32 s49, s33, s34")
        vb1 = v("b1"); vxf = v("xf"); vb2 = v("b2")
        a(f"v_and_b32 v{t0}, 1, v{vl}"); a(f"v_lshlrev_b32 v{t0}, 4, v{t0}")
        a(f"v_bfe_u32 v{t1}, v{vl}, 1, 2"); a(f"v_add_u32 v{t0}, v{t0}, v{t1}")
        a("s_lshl_b32 s33, s43, 5"); a("s_lshl_b32 s34, s32, 2"); a("s_add_u32 s33, s33, s34")
        a(f"v_add_lshl_u32 v{vb1}, v{t0}, s33, 1")
        a("s_lshr_b32 s33, s31, 4"); a("s_lshl_b32 s34, s30, 1"); a("s_add_u32 s50, s33, s34")
        a("s_bfe_u32 s51, s31, 0x30001")
        a("s_lshl_b32 s33, s50, 5"); a("s_lshl_b32 s34, s51, 1"); a("s_add_u32 s33, s33, s34")
        vcol = v("col")
        a(f"v_and_b32 v{t0}, 1, v{vb}"); a(f"v_lshrrev_b32 v{t1}, 1, v{vb}"); a(f"v_lshl_add_u32 v{t0}, v{t1}, 4, v{t0}")
        a(f"v_add_lshl_u32 v{vcol}, v{t0}, s33, 1")
        a("s_waitcnt lgkmcnt(0)")
        self.stamp("karg")
        a("s_load_dword s36, s[28:29], 0")
        vX = v("X", 4, 2)
        self.issue("sm", f"global_load_ushort v{vb1}, v{vb1}, s[18:19]")
        self.issue("sm", f"global_load_ushort v{vxf}, v{vcol}, s[4:5]")
        self.issue("sm", f"global_load_ushort v{vb2}, v{vcol}, s[22:23]")
        self.issue("x", f"global_load_dwordx4 {vr(vX,4)}, v{vl16}, s[4:5]")
        for base, off in ((10, 46), (16, 47), (6, 44), (8, 45), (12, 48), (20, 49)):
            a(f"s_add_u32 s{base}, s{base}, s{off}"); a(f"s_addc_u32 s{base+1}, s{base+1}, 0")
            if base == 10:
                a("s_lshl_b32 s33, s32, 12"); a(f"s_add_u32 m0, s33, {WQB}")
                for i in range(4):
                    if i: a(f"v_add_u32 v{t0}, {64512*i}, v{vWQ}")
                    self.issue("wq", f"global_load_lds_dwordx4 v{t0 if i else vWQ}, s[10:11] offset:{1024*i}{NT}")
            if base == 16:
                a("s_lshl_b32 s33, s32, 11"); a(f"s_add_u32 m0, s33, {W1B}")
                a("s_cmp_lt_u32 s31, 28"); a("s_cselect_b32 exec_lo, -1, 1"); a("s_cselect_b32 exec_hi, -1, 0")
                for i in range(2):
                    if i: a(f"v_add_u32 v{t0}, {27648*i}, v{vW1}")
                    self.issue("w1", f"global_load_lds_dwordx4 v{t0 if i else vW1}, s[16:17] offset:{1024*i}{NT}")
                a("s_mov_b64 exec, -1")
            if base == 6:
                a("s_lshl_b32 s33, s32, 13"); a(f"s_add_u32 m0, s33, {KB}")
                for n in range(8):
                    if n == 4:
                        a("s_add_u32 s6, s6, 4096"); a("s_addc_u32 s7, s7, 0"); a("s_add_u32 m0, m0, 4096"); a("s_nop 0")
                    self.issue("K", f"global_load_lds_dwordx4 v{vK+n%4}, s[6:7] offset:{1024*(n%4)}{NT}")
        self.stamp("L1")
        if o["codepf"]:
            a("s_cmp_lg_u32 s31, 0"); a("s_cbranch_scc1 L_nopf"); a("s_cmp_lg_u32 s32, 3"); a("s_cbranch_scc1 L_nopf")
            a("s_getpc_b64 s[34:35]"); a(f"v_lshlrev_b32 v{t0}, 7, v{vl}")
            self.issue("pf", f"global_load_dword v{t1}, v{t0}, s[34:35]", sure=False)
            a.label("L_nopf")
        vr4 = v("r4"); vc4 = v("c4")
        a(f"v_lshrrev_b32 v{vr4}, 2, v{vj}")
        a(f"v_and_b32 v{vc4}, 3, v{vj}")
        vTq = v("Tq", 2); vTv = v("Tv", 2); vTo = v("To", 2); vKr = v("Kr", 4)
        a("s_and_b32 s33, s32, 1"); a("s_lshl_b32 s33, s33, 2")
        a(f"v_lshrrev_b32 v{t0}, 1, v{vc4}"); a(f"v_add_u32 v{t0}, s33, v{t0}")
        a(f"v_and_b32 v{t1}, 1, v{vb}"); a(f"v_lshlrev_b32 v{t1}, 1, v{t1}"); a(f"v_lshrrev_b32 v{t2}, 1, v{vr4}"); a(f"v_add_lshl_u32 v{t1}, v{t1}, v{t2}, 1")
        a(f"v_xor_b32 v{t0}, v{t0}, v{t1}"); a(f"v_lshlrev_b32 v{t0}, 4, v{t0}")
        a(f"v_and_b32 v{t1}, 1, v{vc4}"); a(f"v_lshl_or_b32 v{t3}, v{t1}, 3, v{t0}")
        a(f"v_lshl_add_u32 v{t2}, v{vb}, 2, v{vr4}")
        a(f"v_lshl_add_u32 v{t3}, v{t2}, 7, v{t3}")
        a("s_cmp_lt_u32 s32, 2"); a(f"s_cselect_b32 s33, 0, {W1B-WQB}"); a(f"s_add_u32 s33, s33, {WQB}")
        a(f"v_add_u32 v{vTq}, s33, v{t3}"); a(f"v_xor_b32 v{vTq+1}, 32, v{vTq}")
        a("s_lshl_b32 s33, s32, 2")
        a(f"v_lshrrev_b32 v{t0}, 1, v{vc4}"); a(f"v_add_u32 v{t0}, s33, v{t0}")
        a(f"v_and_b32 v{t3}, 7, v{t2}"); a(f"v_lshlrev_b32 v{t3}, 1, v{t3}"); a(f"v_xor_b32 v{t0}, v{t0}, v{t3}")
        a(f"v_lshlrev_b32 v{t0}, 4, v{t0}"); a(f"v_lshl_or_b32 v{t0}, v{t1}, 3, v{t0}")
        a(f"v_lshl_add_u32 v{vTv}, v{t2}, 8, v{t0}"); a(f"v_xor_b32 v{vTv+1}, 32, v{vTv}")
        a(f"v_add_u32 v{vTo}, {WOB}, v{vTv}"); a(f"v_add_u32 v{vTo+1}, {WOB}, v{vTv+1}")
        a(f"v_xor_b32 v{t0}, v{vj}, v{vb}"); a(f"v_lshlrev_b32 v{t0}, 4, v{t0}"); a(f"v_lshl_or_b32 v{t0}, v{vj}, 8, v{t0}")
        a("s_lshl_b32 s33, s32, 13"); a(f"v_add_u32 v{vKr}, s33, v{t0}")
        for c in range(1, 4): a(f"v_xor_b32 v{vKr+c}, {64*c}, v{vKr}")
        vXw = v("Xw"); vXr = v("Xr")
        a(f"v_lshrrev_b32 v{t0}, 2, v{vl}"); a(f"v_lshlrev_b32 v{t0}, 6, v{t0}")
        a(f"v_and_b32 v{t1}, 1, v{vl}"); a(f"v_lshl_or_b32 v{t0}, v{t1}, 5, v{t0}")
        a(f"v_bfe_u32 v{t1}, v{vl}, 1, 1"); a(f"v_lshl_or_b32 v{t0}, v{t1}, 3, v{t0}")
        a("s_lshl_b32 s33, s32, 10"); a(f"s_add_u32 s33, s33, {XN}"); a(f"v_add_u32 v{vXw}, s33, v{t0}")
        a("s_lshr_b32 s34, s31, 3"); a("s_lshl_b32 s34, s34, 8"); a("s_lshl_b32 s35, s30, 7"); a("s_cmp_lt_u32 s32, 2"); a("s_cselect_b32 s34, s34, s35")
        a("s_add_u32 s33, s33, s34"); a(f"v_lshl_add_u32 v{vXr}, v{vb}, 4, s33")
        vP1 = v("P1")
        a("s_lshl_b32 s33, s30, 13"); a("s_bfe_u32 s34, s31, 0x20001"); a("s_lshl_b32 s34, s34, 11"); a("s_add_u32 s33, s33, s34")
        a("s_lshr_b32 s34, s31, 3"); a("s_lshl_b32 s34, s34, 9"); a("s_add_u32 s33, s33, s34")
        a("s_and_b32 s34, s31, 1"); a("s_lshl_b32 s34, s34, 8"); a("s_add_u32 s33, s33, s34"); a(f"s_add_u32 s33, s33, {WS_Q1}")
        a("s_lshl_b32 s34, s31, 11"); a("s_lshl_b32 s35, s30, 8"); a("s_add_u32 s34, s34, s35"); a(f"s_add_u32 s34, s34, {WS_H1}")
        a("s_cmp_lt_u32 s32, 2"); a("s_cselect_b32 s33, s33, s34")
        a("s_and_b32 s34, s32, 1"); a("s_lshl_b32 s34, s34, 7"); a("s_add_u32 s33, s33, s34")
        a(f"v_lshl_add_u32 v{vP1}, v{vj}, 3, s33")
        vTagA, vTagB, vTagL = v("TagA"), v("TagB"), v("TagL")
        a("s_waitcnt lgkmcnt(0)")
        a("s_add_u32 s36, s36, 0x9E3779B9")
        a("s_lshr_b32 s37, s36, 8"); a("s_lshr_b32 s38, s36, 16"); a("s_lshr_b32 s39, s36, 24")
        a(f"v_and_b32 v{t0}, 1, v{vl}"); a(f"v_lshlrev_b32 v{t0}, 4, v{t0}")
        a(f"v_lshrrev_b32 v{vTagA}, v{t0}, s36"); a(f"v_lshrrev_b32 v{vTagB}, 8, v{vTagA}")
        a(f"v_and_b32 v{t0}, 3, v{vl}"); a(f"v_lshlrev_b32 v{t0}, 3, v{t0}"); a(f"v_lshrrev_b32 v{vTagL}, v{t0}, s36")
        vF = v("F", 8, 2)
        self.wait("x")
        self.stamp("x")
        for i in range(4):
            a(f"v_lshlrev_b32 v{vF+2*i}, 16, v{vX+i}"); a(f"v_and_b32 v{vF+2*i+1}, 0xffff0000, v{vX+i}")
        def wave_sum(r, sdst):
            for k in (8, 4, 2, 1): a(f"v_add_f32_dpp v{r}, v{r}, v{r} row_ror:{k} row_mask:0xf bank_mask:0xf")
            a(f"v_add_f32_dpp v{r}, v{r}, v{r} row_bcast:15 row_mask:0xa bank_mask:0xf")
            a(f"v_add_f32_dpp v{r}, v{r}, v{r} row_bcast:31 row_mask:0xc bank_mask:0xf")
            a(f"v_readlane_b32 {sdst}, v{r}, 63")
        a(f"v_add_f32 v{t0}, v{vF}, v{vF+1}"); a(f"v_add_f32 v{t1}, v{vF+2}, v{vF+3}"); a(f"v_add_f32 v{t2}, v{vF+4}, v{vF+5}"); a(f"v_add_f32 v{t3}, v{vF+6}, v{vF+7}")
        a(f"v_add_f32 v{t0}, v{t0}, v{t1}"); a(f"v_add_f32 v{t2}, v{t2}, v{t3}"); a(f"v_add_f32 v{t0}, v{t0}, v{t2}")
        wave_sum(t0, "s33")
        a(f"v_mul_f32 v{t1}, s33, v{self.const('inv512', 1/512.)}")
        vD = v("D", 8, 2)
        for i in range(8): a(f"v_sub_f32 v{vD+i}, v{vF+i}, v{t1}")
        a(f"v_mul_f32 v{t0}, v{vD}, v{vD}"); a(f"v_mul_f32 v{t2}, v{vD+1}, v{vD+1}")
        for i in range(2, 8): a(f"v_fmac_f32 v{t0 if i%2==0 else t2}, v{vD+i}, v{vD+i}")
        a(f"v_add_f32 v{t0}, v{t0}, v{t2}")
        a(f"v_cvt_pk_bf16_f32 v{t1}, v{t1}, v{t1}")
        wave_sum(t0, "s33")
        a(f"v_and_b32 v{t1}, 0xffff0000, v{t1}")
        for i in range(8): a(f"v_sub_f32 v{vD+i}, v{vF+i}, v{t1}")
        a(f"v_mul_f32 v{t0}, s33, v{self.names['c_inv512'][0]}")
        a(f"v_cvt_pk_bf16_f32 v{t0}, v{t0}, v{t0}"); a(f"v_and_b32 v{t0}, 0xffff0000, v{t0}")
        a(f"v_add_f32 v{t0}, 0x3727c5ac, v{t0}")
        a(f"v_cvt_pk_bf16_f32 v{t0}, v{t0}, v{t0}"); a(f"v_and_b32 v{t0}, 0xffff0000, v{t0}")
        a(f"v_sqrt_f32 v{t0}, v{t0}")
        for i in range(4): a(f"v_cvt_pk_bf16_f32 v{vX+i}, v{vD+2*i}, v{vD+2*i+1}")
        a(f"v_cvt_pk_bf16_f32 v{t0}, v{t0}, v{t0}"); a(f"v_and_b32 v{t0}, 0xffff0000, v{t0}")
        a(f"v_rcp_f32 v{t0}, v{t0}")
        for i in range(4):
            a(f"v_lshlrev_b32 v{vD+2*i}, 16, v{vX+i}"); a(f"v_and_b32 v{vD+2*i+1}, 0xffff0000, v{vX+i}")
        for i in range(8): a(f"v_mul_f32 v{vD+i}, v{vD+i}, v{t0}")
        for i in range(4): a(f"v_cvt_pk_bf16_f32 v{vX+i}, v{vD+2*i}, v{vD+2*i+1}")
        a(f"ds_write2_b64 v{vXw}, {vr(vX,2)}, {vr(vX+2,2)} offset0:0 offset1:2")
        vA = v("A", 16, 2)
        a("s_waitcnt lgkmcnt(0)")
        for n in range(4): a(f"ds_read_b128 {vr(vA+4*n,4)}, v{vXr} offset:{64*n}")
        self.stamp("LN")
        self.wait("wq", "w1")
        a("s_barrier")
        self.stamp("B1")
        vB = v("B", 32, 2); vAcc = v("Acc", 8, 2); vSt = v("St", 4, 2)
        def trs(dst, addr, off): a(f"ds_read_b64_tr_b16 {vr(dst,2)}, v{addr} offset:{off}")
        for n in range(2):
            for blk in range(2):
                for tt in range(2): trs(vB + 8*n + 4*blk + 2*tt, vTq + blk, n*4096 + tt*2048)
        a("s_cmp_ge_u32 s32, 2"); a("s_cbranch_scc1 L_h2")
        for n in range(2, 4):
            for blk in range(2):
                for tt in range(2): trs(vB + 8*n + 4*blk + 2*tt, vTq + blk, n*4096 + tt*2048)
        a("s_waitcnt lgkmcnt(8)")
        for n in range(2):
            for blk in range(2):
                a(f"v_mfma_f32_16x16x32_bf16 {vr(vAcc+4*blk,4)}, {vr(vA+4*n,4)}, {vr(vB+8*n+4*blk,4)}, {'0' if n==0 else vr(vAcc+4*blk,4)}")
        a("s_waitcnt lgkmcnt(0)")
        for n in range(2, 4):
            for blk in range(2):
                a(f"v_mfma_f32_16x16x32_bf16 {vr(vAcc+4*blk,4)}, {vr(vA+4*n,4)}, {vr(vB+8*n+4*blk,4)}, {vr(vAcc+4*blk,4)}")
        a("s_branch L_pub1")
        a.label("L_h2")
        a("s_waitcnt lgkmcnt(0)")
        for n in range(2):
            for blk in range(2):
                a(f"v_mfma_f32_16x16x32_bf16 {vr(vAcc+4*blk,4)}, {vr(vA+4*n,4)}, {vr(vB+8*n+4*blk,4)}, {'0' if n==0 else vr(vAcc+4*blk,4)}")
        a("s_cmp_ge_u32 s31, 28"); a("s_cbranch_scc1 L_nopub1")
        a.label("L_pub1")
        a("s_nop 7")
        a(f"v_bfi_b32 v{vSt}, s40, v{vTagA}, v{vAcc}"); a(f"v_bfi_b32 v{vSt+1}, s40, v{vTagB}, v{vAcc+4}")
        a("s_mov_b64 exec, 0xffff")
        self.issue("pub1", f"global_store_dwordx2 v{vP1}, {vr(vSt,2)}, s[28:29] sc1", sure=False)
        a("s_mov_b64 exec, -1")
        a.label("L_nopub1")
        self.stamp("pub1")
        def loadV(n):
            if n == 0:
                a("s_lshl_b32 s33, s32, 11"); a(f"s_add_u32 m0, s33, {VB}")
            else:
                a("s_add_u32 s8, s8, 8192"); a("s_addc_u32 s9, s9, 0"); a("s_add_u32 m0, m0, 8192")
            a("s_nop 0")
            for i in range(2):
                self.issue(f"V{n}", f"global_load_lds_dwordx4 v{vV+i}, s[8:9] offset:{1024*i}{NT}")
        loadV(0); loadV(1)
        vG1 = v("G1"); vQw = v("Qw"); vQr = v("Qr"); vMw = v("Mw"); vMr = v("Mr"); vPw = v("Pw")
        a("s_lshl_b32 s33, s30, 13"); a("s_lshl_b32 s34, s32, 11"); a("s_add_u32 s33, s33, s34"); a(f"s_add_u32 s33, s33, {WS_Q1}")
        a(f"v_add_u32 v{vG1}, s33, v{vl16}")
        a(f"v_bfe_u32 v{t0}, v{vl}, 3, 2"); a(f"v_lshlrev_b32 v{t0}, 6, v{t0}"); a(f"v_and_b32 v{t1}, 7, v{vl}"); a(f"v_lshl_or_b32 v{t0}, v{t1}, 2, v{t0}")
        a(f"v_lshrrev_b32 v{t1}, 5, v{vl}"); a(f"v_lshl_or_b32 v{t0}, v{t1}, 5, v{t0}")
        a("s_mul_i32 s33, s32, 320"); a(f"s_add_u32 s33, s33, {QL}"); a(f"v_add_u32 v{vQw}, s33, v{t0}")
        a(f"v_mul_u32_u24 v{t0}, 320, v{vr4}"); a(f"v_lshl_add_u32 v{t0}, v{vb}, 4, v{t0}"); a(f"v_add_u32 v{vQr}, {QL}, v{t0}")
        a(f"v_lshlrev_b32 v{t0}, 4, v{vr4}"); a(f"v_add_u32 v{vMr}, {MX}, v{t0}")
        a("s_lshl_b32 s33, s32, 2"); a(f"v_add_u32 v{vMw}, s33, v{vMr}")
        vPr = v("Pr")
        a(f"v_add_u32 v{vPr}, {PL}, v{vl16}")
        a("s_lshl_b32 s33, s32, 10"); a(f"v_add_u32 v{vPw}, s33, v{vPr}")
        vKo = v("Ko", 32, 2)
        self.wait("K")
        self.stamp("K")
        for t in range(2):
            for c in range(4): a(f"ds_read_b128 {vr(vKo+16*t+4*c,4)}, v{vKr+c} offset:{4096*t}")
        vG = v("G", 8, 2)
        def gq(track):
            for i in range(2):
                txt = f"global_load_dwordx4 {vr(vG+4*i,4)}, v{vG1}, s[28:29] offset:{1024*i} sc1"
                if track: self.issue("gq", txt)
                else: a(txt)
        gq(True)
        loadV(2); loadV(3)
        def loadW():
            a("s_lshl_b32 s33, s32, 12"); a(f"s_add_u32 m0, s33, {WOB}")
            for i in range(4):
                a(f"v_add_u32 v{t0}, {3072*i}, v{vWO+i%2}")
                self.issue("wo", f"global_load_lds_dwordx4 v{t0}, s[12:13] offset:{1024*i}{NT}")
            a("s_lshl_b32 s33, s32, 11"); a(f"s_add_u32 m0, s33, {W2B}")
            a("s_cmp_lt_u32 s41, 56"); a("s_cselect_b32 exec_lo, -1, 1"); a("s_cselect_b32 exec_hi, -1, 0")
            for i in range(2):
                a(f"v_add_u32 v{t0}, {3072*i}, v{vWO+i%2}")
                self.issue("w2", f"global_load_lds_dwordx4 v{t0}, s[20:21] offset:{1024*i}{NT}")
            a("s_mov_b64 exec, -1")
        if o["wo_pos"] == "early": loadW()
        a("s_mov_b32 s52, 0")
        self.wait("gq")
        a.label("L_chk1")
        a(f"v_xor_b32 v{t0}, s36, v{vG}")
        for i in range(1, 8): a(f"v_bitop3_b32 v{t0}, v{t0}, v{vG+i}, s{36+i%4} bitop3:0xf6")
        a(f"v_and_b32 v{t0}, s40, v{t0}")
        a(f"v_cmp_ne_u32 vcc, 0, v{t0}")
        a("s_cbranch_vccz L_ok1")
        a("s_add_u32 s52, s52, 1"); a(f"s_cmp_ge_u32 s52, {o['maxpoll']}"); a("s_cbranch_scc1 L_end")
        gq(False); a("s_waitcnt vmcnt(0)"); a("s_branch L_chk1")
        a.label("L_ok1")
        self.stamp("gq")
        for i in range(8): a(f"v_and_b32 v{vG+i}, 0xffffff00, v{vG+i}")
        for i in range(4): a(f"v_add_f32 v{vG+i}, v{vG+i}, v{vG+4+i}")
        a(f"v_permlane32_swap_b32 v{vG}, v{vG+1}"); a(f"v_permlane32_swap_b32 v{vG+2}, v{vG+3}")
        a(f"v_add_f32 v{t0}, v{vG}, v{vG+1}"); a(f"v_add_f32 v{t1}, v{vG+2}, v{vG+3}")
        a(f"v_cvt_pk_bf16_f32 v{t0}, v{t0}, v{t1}")
        a(f"ds_write_b32 v{vQw}, v{t0}")
        a("s_waitcnt lgkmcnt(0)")
        a("s_barrier")
        for c in range(4): a(f"ds_read_b128 {vr(vA+4*c,4)}, v{vQr} offset:{64*c}")
        self.stamp("B2")
        vS = v("S", 8, 2)
        for c in range(4):
            a(f"s_waitcnt lgkmcnt({3-c})")
            for t in range(2):
                a(f"v_mfma_f32_16x16x32_bf16 {vr(vS+4*t,4)}, {vr(vKo+16*t+4*c,4)}, {vr(vA+4*c,4)}, {'0' if c==0 else vr(vS+4*t,4)}")
        vU = v("U", 4, 2)
        cs = self.const("scale", 128 ** -0.5)
        for i in range(4): a(f"v_cvt_pk_bf16_f32 v{vU+i}, v{vS+2*i}, v{vS+2*i+1}")
        for i in range(4):
            a(f"v_lshlrev_b32 v{vS+2*i}, 16, v{vU+i}"); a(f"v_and_b32 v{vS+2*i+1}, 0xffff0000, v{vU+i}")
        for i in range(8): a(f"v_mul_f32 v{vS+i}, v{vS+i}, v{cs}")
        for i in range(4): a(f"v_cvt_pk_bf16_f32 v{vU+i}, v{vS+2*i}, v{vS+2*i+1}")
        for i in range(4):
            a(f"v_lshlrev_b32 v{vS+2*i}, 16, v{vU+i}"); a(f"v_and_b32 v{vS+2*i+1}, 0xffff0000, v{vU+i}")
        a(f"v_max3_f32 v{t0}, v{vS}, v{vS+1}, v{vS+2}"); a(f"v_max3_f32 v{t1}, v{vS+3}, v{vS+4}, v{vS+5}")
        a(f"v_max3_f32 v{t0}, v{t0}, v{vS+6}, v{vS+7}"); a(f"v_max_f32 v{t0}, v{t0}, v{t1}")
        a(f"v_mov_b32 v{t1}, v{t0}"); a(f"v_permlane16_swap_b32 v{t0}, v{t1}"); a(f"v_max_f32 v{t0}, v{t0}, v{t1}")
        a(f"v_mov_b32 v{t1}, v{t0}"); a(f"v_permlane32_swap_b32 v{t0}, v{t1}"); a(f"v_max_f32 v{t0}, v{t0}, v{t1}")
        a("s_mov_b64 exec, 0x1111")
        a(f"ds_write_b32 v{vMw}, v{t0}")
        a("s_mov_b64 exec, -1")
        a("s_waitcnt lgkmcnt(0)")
        a("s_barrier")
        a(f"ds_read_b128 {vr(vU,4)}, v{vMr}")
        self.stamp("B3")
        vM = v("M")
        cl2 = self.const("log2e", 1.4426950408889634)
        a("s_waitcnt lgkmcnt(0)")
        a(f"v_max3_f32 v{t0}, v{vU}, v{vU+1}, v{vU+2}"); a(f"v_max_f32 v{t0}, v{t0}, v{vU+3}")
        a(f"v_mul_f32 v{vM}, v{t0}, v{cl2}")
        for i in range(8): a(f"v_fma_f32 v{vS+i}, v{vS+i}, v{cl2}, -v{vM}")
        for i in range(8): a(f"v_exp_f32 v{vS+i}, v{vS+i}")
        for i in range(4): a(f"v_cvt_pk_bf16_f32 v{vU+i}, v{vS+2*i}, v{vS+2*i+1}")
        a(f"ds_write_b128 v{vPw}, {vr(vU,4)}")
        a("s_waitcnt lgkmcnt(0)")
        a("s_barrier")
        for n in range(4): a(f"ds_read_b128 {vr(vA+4*n,4)}, v{vPr} offset:{1024*n}")
        self.stamp("B4")
        def pv_reads(n):
            for blk in range(2):
                for tt in range(2): trs(vB + 8*n + 4*blk + 2*tt, vTv + blk, VB + n*8192 + tt*4096)
        def pv_mfma(n):
            for blk in range(2):
                a(f"v_mfma_f32_16x16x32_bf16 {vr(vAcc+4*blk,4)}, {vr(vA+4*n,4)}, {vr(vB+8*n+4*blk,4)}, {'0' if n==0 else vr(vAcc+4*blk,4)}")
        pv_reads(0); pv_reads(1)
        a("s_cmp_lg_u32 s32, 0"); a("s_cbranch_scc1 L_noml")
        one = self.const_bf16_ones()
        a("s_waitcnt lgkmcnt(8)")
        for n in range(4):
            a(f"v_mfma_f32_16x16x32_bf16 {vr(vS,4)}, {vr(one,4)}, {vr(vA+4*n,4)}, {'0' if n==0 else vr(vS,4)}")
        a("s_lshl_b32 s33, s30, 5"); a("s_add_u32 s33, s33, s31"); a("s_lshl_b32 s33, s33, 6"); a(f"s_add_u32 s33, s33, {WS_ML}")
        a(f"v_lshl_add_u32 v{t1}, v{vj}, 2, s33")
        a(f"v_mov_b32 v{t0}, s36")
        a("s_mov_b64 s[34:35], 0x2222"); a("s_mov_b64 vcc, 0x1111")
        a(f"v_cndmask_b32 v{t0}, v{t0}, v{vS}, s[34:35]")
        a(f"v_cndmask_b32 v{t0}, v{t0}, v{vM}, vcc")
        a("s_mov_b64 exec, 0xffff")
        self.issue("pubml", f"global_store_dword v{t1}, v{t0}, s[28:29] sc1", sure=False)
        a("s_mov_b64 exec, -1")
        a.label("L_noml")
        a("s_waitcnt lgkmcnt(0)")
        pv_mfma(0); pv_mfma(1)
        if o["wo_pos"] == "mid": loadW()
        vP2 = v("P2"); vG2 = v("G2"); vGml = v("Gml"); vGh = v("Gh"); vAw = v("Aw"); vGw = v("Gw"); vAr = v("Ar"); vP3 = v("P3"); vG3 = v("G3")
        a("s_lshl_b32 s33, s30, 16"); a("s_lshl_b32 s34, s31, 8"); a("s_add_u32 s33, s33, s34")
        a("s_lshr_b32 s34, s32, 1"); a("s_lshl_b32 s34, s34, 13"); a("s_add_u32 s33, s33, s34")
        a("s_and_b32 s34, s32, 1"); a("s_lshl_b32 s34, s34, 7"); a("s_add_u32 s33, s33, s34"); a(f"s_add_u32 s33, s33, {WS_O2}")
        a(f"v_lshlrev_b32 v{t0}, 14, v{vb}"); a(f"v_lshl_or_b32 v{t0}, v{vj}, 3, v{t0}"); a(f"v_add_u32 v{vP2}, s33, v{t0}")
        a("s_lshl_b32 s33, s41, 13"); a("s_lshl_b32 s34, s32, 6"); a("s_add_u32 s33, s33, s34"); a(f"s_add_u32 s33, s33, {WS_O2}")
        a(f"v_lshlrev_b32 v{t0}, 11, v{vb}"); a(f"v_lshl_or_b32 v{t0}, v{vj}, 2, v{t0}"); a(f"v_add_u32 v{vG2}, s33, v{t0}")
        a("s_lshl_b32 s33, s30, 11"); a("s_lshr_b32 s34, s31, 3"); a("s_lshl_b32 s34, s34, 4"); a("s_add_u32 s33, s33, s34"); a(f"s_add_u32 s33, s33, {WS_ML}")
        a(f"v_and_b32 v{t0}, 7, v{vj}"); a(f"v_lshl_add_u32 v{t0}, v{vb}, 3, v{t0}"); a(f"v_lshl_add_u32 v{vGml}, v{t0}, 6, s33")
        a("s_lshr_b32 s33, s43, 1"); a("s_lshl_b32 s33, s33, 11"); a("s_and_b32 s34, s43, 1"); a("s_lshl_b32 s34, s34, 7"); a("s_add_u32 s33, s33, s34")
        a("s_lshl_b32 s34, s32, 5"); a("s_add_u32 s33, s33, s34"); a(f"s_add_u32 s33, s33, {WS_H1}")
        a(f"v_lshrrev_b32 v{t0}, 3, v{vl}"); a(f"v_lshlrev_b32 v{t0}, 8, v{t0}"); a(f"v_and_b32 v{t1}, 7, v{vl}"); a(f"v_lshl_or_b32 v{t0}, v{t1}, 2, v{t0}")
        a(f"v_add_u32 v{vGh}, s33, v{t0}")
        a("s_lshr_b32 s33, s32, 1"); a("s_lshl_b32 s33, s33, 6"); a("s_and_b32 s34, s32, 1"); a("s_lshl_b32 s34, s34, 5"); a("s_add_u32 s33, s33, s34"); a(f"s_add_u32 s33, s33, {AL}")
        a(f"v_lshrrev_b32 v{t0}, 3, v{vj}"); a(f"v_lshlrev_b32 v{t0}, 4, v{t0}"); a(f"v_and_b32 v{t1}, 1, v{vj}"); a(f"v_lshl_or_b32 v{t0}, v{t1}, 3, v{t0}")
        a(f"v_bfe_u32 v{t2}, v{vj}, 1, 2"); a(f"v_lshl_or_b32 v{t0}, v{t2}, 1, v{t0}"); a(f"v_add_u32 v{vAw}, s33, v{t0}")
        a(f"v_lshlrev_b32 v{t0}, 3, v{t1}"); a(f"v_lshl_or_b32 v{t0}, v{t2}, 1, v{t0}")
        a("s_lshl_b32 s33, s32, 4"); a(f"s_add_u32 s33, s33, {AL+128}"); a(f"v_add_u32 v{vGw}, s33, v{t0}")
        a(f"v_lshlrev_b32 v{t0}, 4, v{vb}"); a(f"v_add_u32 v{vAr}, {AL}, v{t0}")
        a("s_lshl_b32 s33, s41, 11"); a("s_lshl_b32 s34, s42, 9"); a("s_add_u32 s33, s33, s34"); a("s_lshl_b32 s34, s32, 7"); a("s_add_u32 s33, s33, s34"); a(f"s_add_u32 s33, s33, {WS_O3}")
        a(f"v_lshl_add_u32 v{vP3}, v{vj}, 3, s33")
        a("s_lshl_b32 s33, s50, 7"); a("s_lshl_b32 s34, s51, 4"); a("s_add_u32 s33, s33, s34"); a(f"s_add_u32 s33, s33, {WS_O3}")
        a(f"v_lshl_add_u32 v{vG3}, v{vl}, 11, s33")
        self.wait("V3")
        a("s_barrier")
        self.stamp("V")
        pv_reads(2); pv_reads(3)
        a("s_waitcnt lgkmcnt(4)"); pv_mfma(2)
        a("s_waitcnt lgkmcnt(0)"); pv_mfma(3)
        a(f"v_bfi_b32 v{vSt}, s40, v{vTagA}, v{vAcc}"); a(f"v_bfi_b32 v{vSt+1}, s40, v{vTagB}, v{vAcc+4}")
        self.issue("pub2", f"global_store_dwordx2 v{vP2}, {vr(vSt,2)}, s[28:29] sc1")
        self.stamp("pub2")
        if o["wo_pos"] == "late": loadW()
        vML = v("ML", 4, 2); vH = v("H")
        a("s_mov_b32 s52, 0")
        a.label("L_poll_ml")
        a(f"global_load_dwordx4 {vr(vML,4)}, v{vGml}, s[28:29] sc1")
        a(f"global_load_dword v{vH}, v{vGh}, s[28:29] sc1")
        a("s_waitcnt vmcnt(0)"); self.vm = []
        a(f"v_xor_b32 v{t0}, v{vTagL}, v{vH}"); a(f"v_and_b32 v{t0}, s40, v{t0}")
        a(f"v_bitop3_b32 v{t0}, v{t0}, v{vML+2}, s36 bitop3:0xf6")
        a(f"v_cmp_ne_u32 vcc, 0, v{t0}")
        a("s_cbranch_vccz L_ok_ml")
        a("s_add_u32 s52, s52, 1"); a(f"s_cmp_ge_u32 s52, {o['maxpoll']}"); a("s_cbranch_scc1 L_end")
        a(f"s_sleep {o['sleep2']}")
        a("s_branch L_poll_ml")
        a.label("L_ok_ml")
        self.stamp("ml")
        a("s_barrier")
        for n in range(3):
            for blk in range(2):
                for tt in range(2): trs(vB + 8*n + 4*blk + 2*tt, vTo + blk, n*8192 + tt*4096)
        vO = v("O", 8, 2)
        def go():
            for n in range(8): a(f"global_load_dword v{vO+n}, v{vG2}, s[28:29] offset:{256*n} sc1")
        go()
        vW = v("W")
        a(f"v_max_f32_dpp v{t0}, v{vML}, v{vML} row_ror:1 row_mask:0xf bank_mask:0xf")
        a(f"v_and_b32 v{vH}, 0xffffff00, v{vH}")
        a(f"v_max_f32_dpp v{t0}, v{t0}, v{t0} row_ror:2 row_mask:0xf bank_mask:0xf")
        a(f"v_add_f32_dpp v{vH}, v{vH}, v{vH} row_ror:8 row_mask:0xf bank_mask:0xf")
        a(f"v_max_f32_dpp v{t0}, v{t0}, v{t0} row_ror:4 row_mask:0xf bank_mask:0xf")
        a(f"v_mov_b32 v{t3}, v{vH}")
        a(f"v_mov_b32 v{t1}, v{t0}")
        a(f"v_permlane16_swap_b32 v{vH}, v{t3}"); a(f"v_permlane16_swap_b32 v{t0}, v{t1}")
        a(f"v_add_f32 v{vH}, v{vH}, v{t3}"); a(f"v_max_f32 v{t0}, v{t0}, v{t1}")
        a(f"v_mov_b32 v{t3}, v{vH}"); a(f"v_mov_b32 v{t1}, v{t0}")
        a(f"v_permlane32_swap_b32 v{vH}, v{t3}"); a(f"v_permlane32_swap_b32 v{t0}, v{t1}")
        a(f"v_add_f32 v{vH}, v{vH}, v{t3}"); a(f"v_max_f32 v{t0}, v{t0}, v{t1}")
        a(f"v_sub_f32 v{t0}, v{vML}, v{t0}"); a(f"v_exp_f32 v{vW}, v{t0}")
        a(f"v_cvt_pk_bf16_f32 v{vH}, v{vH}, v{vH}"); a(f"v_and_b32 v{vH}, 0xffff0000, v{vH}")
        a(f"v_mul_f32 v{t0}, v{vW}, v{vML+1}")
        a(f"v_lshlrev_b32 v{vb1}, 16, v{vb1}"); a(f"v_add_f32 v{vH}, v{vH}, v{vb1}")
        a(f"v_add_f32_dpp v{t0}, v{t0}, v{t0} row_ror:1 row_mask:0xf bank_mask:0xf")
        a(f"v_cvt_pk_bf16_f32 v{vH}, v{vH}, v{vH}"); a(f"v_and_b32 v{vH}, 0xffff0000, v{vH}")
        a(f"v_add_f32_dpp v{t0}, v{t0}, v{t0} row_ror:2 row_mask:0xf bank_mask:0xf")
        a(f"v_mul_f32 v{t2}, v{vH}, v{vH}")
        cg1 = self.const("g1", -2 * 0.7978845608028654 * 1.4426950408889634)
        cg2 = self.const("g2", -2 * 0.7978845608028654 * 1.4426950408889634 * 0.044715)
        a(f"v_add_f32_dpp v{t0}, v{t0}, v{t0} row_ror:4 row_mask:0xf bank_mask:0xf")
        a(f"v_fma_f32 v{t2}, v{t2}, v{cg2}, v{cg1}"); a(f"v_mul_f32 v{t2}, v{t2}, v{vH}")
        a(f"v_mov_b32 v{t1}, v{t0}"); a(f"v_exp_f32 v{t2}, v{t2}")
        a(f"v_permlane16_swap_b32 v{t0}, v{t1}"); a(f"v_add_f32 v{t0}, v{t0}, v{t1}")
        a(f"v_add_f32 v{t2}, 1.0, v{t2}")
        a(f"v_mov_b32 v{t1}, v{t0}"); a(f"v_rcp_f32 v{t2}, v{t2}")
        a(f"v_permlane32_swap_b32 v{t0}, v{t1}"); a(f"v_add_f32 v{t0}, v{t0}, v{t1}")
        a(f"v_mul_f32 v{vH}, v{vH}, v{t2}"); a(f"v_rcp_f32 v{t0}, v{t0}")
        a(f"v_cvt_pk_bf16_f32 v{vH}, v{vH}, v{vH}")
        a("s_mov_b64 exec, 0xff")
        a(f"ds_write_b16 v{vGw}, v{vH}")
        a("s_mov_b64 exec, -1")
        a(f"v_mul_f32 v{vW}, v{vW}, v{t0}")
        a("s_mov_b32 s52, 0")
        a.label("L_chk2")
        a("s_waitcnt vmcnt(0)")
        a(f"v_xor_b32 v{t0}, v{vTagL}, v{vO}")
        for i in range(1, 8): a(f"v_bitop3_b32 v{t0}, v{t0}, v{vO+i}, v{vTagL} bitop3:0xf6")
        a(f"v_and_b32 v{t0}, s40, v{t0}")
        a(f"v_cmp_ne_u32 vcc, 0, v{t0}")
        a("s_cbranch_vccz L_ok2")
        a("s_add_u32 s52, s52, 1"); a(f"s_cmp_ge_u32 s52, {o['maxpoll']}"); a("s_cbranch_scc1 L_end")
        if o["sleep2"]: a(f"s_sleep {o['sleep2']}")
        go(); a("s_branch L_chk2")
        a.label("L_ok2")
        self.stamp("g2")
        for i in range(8): a(f"v_and_b32 v{vO+i}, 0xffffff00, v{vO+i}")
        a(f"v_mul_f32_dpp v{t0}, v{vW}, v{vO} row_newbcast:0 row_mask:0xf bank_mask:0xf")
        a(f"v_mul_f32_dpp v{t2}, v{vW}, v{vO+1} row_newbcast:1 row_mask:0xf bank_mask:0xf")
        for n in range(2, 8): a(f"v_fmac_f32_dpp v{t0 if n%2==0 else t2}, v{vW}, v{vO+n} row_newbcast:{n} row_mask:0xf bank_mask:0xf")
        a(f"v_add_f32 v{t0}, v{t0}, v{t2}")
        a(f"v_mov_b32 v{t1}, v{t0}"); a(f"v_permlane16_swap_b32 v{t0}, v{t1}"); a(f"v_add_f32 v{t0}, v{t0}, v{t1}")
        a(f"v_mov_b32 v{t1}, v{t0}"); a(f"v_permlane32_swap_b32 v{t0}, v{t1}"); a(f"v_add_f32 v{t0}, v{t0}, v{t1}")
        a(f"v_cvt_pk_bf16_f32 v{t0}, v{t0}, v{t0}")
        a("s_mov_b64 exec, 0xffff")
        a(f"ds_write_b16 v{vAw}, v{t0}")
        a("s_mov_b64 exec, -1")
        a("s_waitcnt lgkmcnt(0)")
        a("s_barrier")
        for n in range(3): a(f"ds_read_b128 {vr(vA+4*n,4)}, v{vAr} offset:{64*n}")
        self.stamp("B7")
        a("s_waitcnt lgkmcnt(1)")
        for n in range(2):
            for blk in range(2):
                a(f"v_mfma_f32_16x16x32_bf16 {vr(vAcc+4*blk,4)}, {vr(vA+4*n,4)}, {vr(vB+8*n+4*blk,4)}, {'0' if n==0 else vr(vAcc+4*blk,4)}")
        a("s_waitcnt lgkmcnt(0)")
        a("s_cmp_ge_u32 s41, 56"); a("s_cbranch_scc1 L_nomlp")
        for blk in range(2):
            a(f"v_mfma_f32_16x16x32_bf16 {vr(vAcc+4*blk,4)}, {vr(vA+8,4)}, {vr(vB+16+4*blk,4)}, {vr(vAcc+4*blk,4)}")
        a.label("L_nomlp")
        a("s_nop 7")
        a(f"v_bfi_b32 v{vSt}, s40, v{vTagA}, v{vAcc}"); a(f"v_bfi_b32 v{vSt+1}, s40, v{vTagB}, v{vAcc+4}")
        a("s_mov_b64 exec, 0xffff")
        a(f"global_store_dwordx2 v{vP3}, {vr(vSt,2)}, s[28:29] sc1")
        a("s_mov_b64 exec, -1")
        self.stamp("pub3")
        a("s_and_b32 s33, s31, 1"); a("s_or_b32 s33, s33, s32"); a("s_cmp_lg_u32 s33, 0"); a("s_cbranch_scc1 L_fin")
        a(f"v_lshlrev_b32 v{vxf}, 16, v{vxf}"); a(f"v_lshlrev_b32 v{vb2}, 16, v{vb2}"); a(f"v_add_f32 v{vxf}, v{vxf}, v{vb2}")
        a("s_mov_b32 s52, 0")
        a.label("L_poll3")
        a(f"global_load_dwordx4 {vr(vG,4)}, v{vG3}, s[28:29] sc1")
        a("s_waitcnt vmcnt(0)")
        a(f"v_xor_b32 v{t0}, s36, v{vG}")
        for i in range(1, 4): a(f"v_bitop3_b32 v{t0}, v{t0}, v{vG+i}, s{36+i} bitop3:0xf6")
        a(f"v_and_b32 v{t0}, s40, v{t0}")
        a(f"v_cmp_ne_u32 vcc, 0, v{t0}")
        a("s_cbranch_vccz L_ok3")
        a("s_add_u32 s52, s52, 1"); a(f"s_cmp_ge_u32 s52, {o['maxpoll']}"); a("s_cbranch_scc1 L_end")
        if o["sleep3"]: a(f"s_sleep {o['sleep3']}")
        a("s_branch L_poll3")
        a.label("L_ok3")
        self.stamp("g3")
        for i in range(4): a(f"v_and_b32 v{vG+i}, 0xffffff00, v{vG+i}")
        a(f"v_permlane32_swap_b32 v{vG}, v{vG+1}"); a(f"v_permlane32_swap_b32 v{vG+2}, v{vG+3}")
        a(f"v_add_f32 v{t0}, v{vG}, v{vG+1}"); a(f"v_add_f32 v{t1}, v{vG+2}, v{vG+3}")
        a(f"v_permlane16_swap_b32 v{t0}, v{t1}"); a(f"v_add_f32 v{t0}, v{t0}, v{t1}")
        for k in (8, 4, 2, 1): a(f"v_add_f32_dpp v{t0}, v{t0}, v{t0} row_ror:{k} row_mask:0xf bank_mask:0xf")
        a(f"v_add_f32 v{t0}, v{t0}, v{vxf}")
        a(f"v_cvt_pk_bf16_f32 v{t0}, v{t0}, v{t0}")
        a("s_mov_b32 exec_lo, 0x10001"); a("s_mov_b32 exec_hi, 0x10001")
        a(f"global_store_short v{vcol}, v{t0}, s[24:25]{' sc1' if o['out_sc1'] else ''}")
        a("s_cmp_lg_u32 s2, 0"); a("s_cbranch_scc1 L_fin")
        a("s_mov_b64 exec, 1")
        a(f"v_mov_b32 v{t1}, 0"); a(f"v_mov_b32 v{t2}, s36")
        a(f"global_store_dword v{t1}, v{t2}, s[28:29] sc1")
        a.label("L_fin")
        if o["stamps"]:
            a("s_mov_b64 exec, -1")
            self.stamp("end")
            a("s_memrealtime s[58:59]")
            a("s_getreg_b32 s55, hwreg(HW_REG_XCC_ID)")
            a("s_waitcnt lgkmcnt(0)")
            a("s_lshl_b32 s33, s2, 2"); a("s_add_u32 s33, s33, s32"); a("s_lshl_b32 s33, s33, 7"); a(f"s_add_u32 s33, s33, {WS_STAMP}")
            a(f"v_mov_b32 v{t1}, s33")
            regs = [56, 58, 55, 52] + [60 + 2*i for i in range(self.nstamp)]
            for i, r in enumerate(regs):
                a(f"v_mov_b32 v{t2}, s{r}"); a(f"global_store_dword v{t1}, v{t2}, s[28:29] offset:{4*i}")
        a.label("L_end")
        a("s_endpgm")
        return self.finish()
    def const(self, name, val):
        import struct
        r = self.v("c_" + name)
        self.consts = getattr(self, "consts", [])
        self.consts.append(f"v_mov_b32 v{r}, {hex(struct.unpack('<I', struct.pack('<f', val))[0])}")
        return r
    def const_bf16_ones(self):
        r = self.v("ones", 4, 2)
        self.consts = getattr(self, "consts", [])
        for i in range(4): self.consts.append(f"v_mov_b32 v{r+i}, 0x3f803f80")
        return r
    def finish(self):
        lines = self.a.lines
        k = next(i for i, l in enumerate(lines) if "s_add_u32 s36, s36, 0x9E3779B9" in l)
        lines[k:k] = ["    " + c for c in self.consts]
        text = "\n".join(lines) + "\n"
        text, n = hazard.fix(text)
        nv = (self.nv + 7) // 8 * 8
        out = kernel_file([(NAME + "_kernel", text, nv, 102, nv)], [(NAME + "_kernel", (256, 1, 1), (256, 1, 1), LDS_BYTES)])
        if self.o["stamps"]: out += "; stamps: " + ",".join(self.stamp_names) + "\n"
        return out

if __name__ == "__main__":
    import ast
    opts = {}
    for kv in sys.argv[1:]:
        k, val = kv.split("=")
        try: val = ast.literal_eval(val)
        except Exception: pass
        opts[k] = val
    print(Gen(**opts).build())
```

```python
import sys
sys.path.insert(0, "tools")
from asmgen import *
import hazard

WS_EPOCH = 0
WS_Q1 = 0x10000
WS_H1 = 0x20000
WS_ML = 0x30000
WS_O2 = 0x40000
WS_O3 = 0xC0000
WS_STAMP = 0x10000000
KB, VB, WQB, W1B, WOB, W2B = 0, 32768, 65536, 81920, 90112, 106496
XN = 114688
QL = 118784
MX = 120064
AL = 120128
PL = 120320
LDS_BYTES = 124416

class Gen:
    def __init__(self, **o):
        self.o = dict(nt=True, stamps=False, wo_pos="early", sleep2=1, sleep3=1, out_sc1=True, dump=None, codepf=False, maxpoll=1 << 17)
        self.o.update(o)
        self.a = Asm()
        self.nv = 0
        self.names = {}
        self.vm = []
        self.nstamp = 0
        self.stamp_names = []
    def v(self, name, n=1, align=1):
        if n > 1: align = max(align, 2)
        self.nv = (self.nv + align - 1) // align * align
        r = self.nv; self.nv += n
        self.names[name] = (r, n)
        return r
    def vr(self, r, n): return f"v[{r}:{r+n-1}]"
    def issue(self, name, text, sure=True):
        self.a(text); self.vm.append((name, sure))
    def wait(self, *names, extra=""):
        idx = max(i for i, (n, s) in enumerate(self.vm) if n in names)
        n = sum(1 for (nm, s) in self.vm[idx + 1:] if s)
        self.a(f"s_waitcnt vmcnt({n}){extra}")
        self.vm = self.vm[idx + 1:]
    def stamp(self, name):
        if not self.o["stamps"]: return
        i = self.nstamp; self.nstamp += 1; self.stamp_names.append(name)
        self.a(f"s_memtime s[{60+2*i}:{61+2*i}]")

    def build(self):
        a, o, v, vr = self.a, self.o, self.v, self.vr
        NT = " nt" if o["nt"] else ""
        v0 = v("tid")
        if o["stamps"] or o.get("pad"):
            a("s_memrealtime s[56:57]")
        self.stamp("start")
        a("s_cmp_ge_u32 s2, 256")
        a("s_cbranch_scc1 L_end")
        a("s_load_dwordx16 s[4:19], s[0:1], 0")
        a("s_load_dwordx8 s[20:27], s[0:1], 64")
        a("s_load_dwordx2 s[28:29], s[0:1], 96")
        vl, vb, vj = v("l"), v("b"), v("j")
        t0, t1, t2, t3 = v("t0"), v("t1"), v("t2"), v("t3")
        a(f"v_lshrrev_b32 v{t0}, 6, v0")
        a(f"v_and_b32 v{vl}, 63, v0")
        a(f"v_readfirstlane_b32 s32, v{t0}")
        a(f"v_lshrrev_b32 v{vb}, 4, v{vl}")
        a(f"v_and_b32 v{vj}, 15, v0")
        a("s_and_b32 s30, s2, 7")
        a("s_lshr_b32 s31, s2, 3")
        a("s_mov_b32 s40, 0xff")
        vK = v("vK", 4); vV = v("vV", 2); vWQ = v("vWQ"); vW1 = v("vW1"); vWO = v("vWO", 2); vl16 = v("l16")
        a(f"v_xor_b32 v{t0}, v{vj}, v{vb}")
        a(f"v_lshlrev_b32 v{t0}, 4, v{t0}")
        a(f"v_lshl_or_b32 v{vK}, v{vb}, 8, v{t0}")
        for n in range(1, 4): a(f"v_xor_b32 v{vK+n}, {64*n}, v{vK}")
        a(f"v_lshlrev_b32 v{t1}, 1, v{vb}")
        a(f"v_xor_b32 v{t2}, v{vj}, v{t1}")
        a(f"v_lshlrev_b32 v{t2}, 4, v{t2}")
        a(f"v_lshl_or_b32 v{vV}, v{vb}, 8, v{t2}")
        a(f"v_xor_b32 v{vV+1}, 0x80, v{vV}")
        a(f"v_lshl_or_b32 v{vWO}, v{vb}, 10, v{t2}")
        a(f"v_xor_b32 v{vWO+1}, 0x80, v{vWO}")
        a(f"v_and_b32 v{t2}, 7, v{vl}")
        a(f"v_xor_b32 v{t2}, v{t2}, v{t1}")
        a(f"v_lshlrev_b32 v{t2}, 4, v{t2}")
        a(f"v_lshrrev_b32 v{t3}, 3, v{vl}")
        a(f"v_lshl_or_b32 v{vWQ}, v{t3}, 13, v{t2}")
        a(f"v_mul_u32_u24 v{t3}, 3584, v{t3}")
        a(f"v_add_u32 v{vW1}, v{t3}, v{t2}")
        a(f"v_lshlrev_b32 v{vl16}, 4, v{vl}")
        a("s_lshr_b32 s33, s31, 2"); a("s_lshl_b32 s34, s30, 3"); a("s_add_u32 s41, s33, s34")
        a("s_and_b32 s42, s31, 3")
        a("s_min_u32 s43, s41, 55")
        a("s_lshl_b32 s33, s30, 24"); a("s_lshl_b32 s34, s31, 15"); a("s_add_u32 s33, s33, s34"); a(f"s_add_u32 s33, s33, {61440*256}")
        a("s_lshl_b32 s34, s32, 13"); a("s_add_u32 s44, s33, s34")
        a("s_lshl_b32 s34, s32, 11"); a("s_add_u32 s45, s33, s34")
        a("s_lshr_b32 s33, s31, 3"); a("s_lshl_b32 s33, s33, 20"); a("s_lshl_b32 s34, s32, 18"); a("s_add_u32 s33, s33, s34")
        a("s_lshl_b32 s34, s30, 10"); a("s_add_u32 s33, s33, s34"); a("s_and_b32 s34, s31, 7"); a("s_lshl_b32 s34, s34, 7"); a("s_add_u32 s46, s33, s34")
        a("s_lshl_b32 s33, s30, 2"); a("s_add_u32 s33, s33, s32"); a(f"s_mul_i32 s33, s33, {16*3584}")
        a("s_min_u32 s34, s31, 27"); a("s_lshl_b32 s34, s34, 7"); a("s_add_u32 s47, s33, s34")
        a("s_lshl_b32 s33, s41, 2"); a("s_add_u32 s33, s33, s32"); a("s_lshl_b32 s33, s33, 14"); a("s_lshl_b32 s34, s42, 8"); a("s_add_u32 s48, s33, s34")
        a("s_lshl_b32 s33, s43, 2"); a("s_add_u32 s33, s33, s32"); a("s_lshl_b32 s33, s33, 13"); a("s_add_u32 s49, s33, s34")
        vb1 = v("b1"); vxf = v("xf"); vb2 = v("b2")
        a(f"v_and_b32 v{t0}, 1, v{vl}"); a(f"v_lshlrev_b32 v{t0}, 4, v{t0}")
        a(f"v_bfe_u32 v{t1}, v{vl}, 1, 2"); a(f"v_add_u32 v{t0}, v{t0}, v{t1}")
        a("s_lshl_b32 s33, s43, 5"); a("s_lshl_b32 s34, s32, 2"); a("s_add_u32 s33, s33, s34")
        a(f"v_add_lshl_u32 v{vb1}, v{t0}, s33, 1")
        a("s_lshr_b32 s33, s31, 4"); a("s_lshl_b32 s34, s30, 1"); a("s_add_u32 s50, s33, s34")
        a("s_bfe_u32 s51, s31, 0x30001")
        a("s_lshl_b32 s33, s50, 5"); a("s_lshl_b32 s34, s51, 1"); a("s_add_u32 s33, s33, s34")
        vcol = v("col")
        a(f"v_and_b32 v{t0}, 1, v{vb}"); a(f"v_lshrrev_b32 v{t1}, 1, v{vb}"); a(f"v_lshl_add_u32 v{t0}, v{t1}, 4, v{t0}")
        a(f"v_add_lshl_u32 v{vcol}, v{t0}, s33, 1")
        a("s_waitcnt lgkmcnt(0)")
        self.stamp("karg")
        a("s_load_dword s36, s[28:29], 0")
        vX = v("X", 4, 2)
        self.issue("sm", f"global_load_ushort v{vb1}, v{vb1}, s[18:19]")
        self.issue("sm", f"global_load_ushort v{vxf}, v{vcol}, s[4:5]")
        self.issue("sm", f"global_load_ushort v{vb2}, v{vcol}, s[22:23]")
        self.issue("x", f"global_load_dwordx4 {vr(vX,4)}, v{vl16}, s[4:5]")
        for base, off in ((10, 46), (16, 47), (6, 44), (8, 45), (12, 48), (20, 49)):
            a(f"s_add_u32 s{base}, s{base}, s{off}"); a(f"s_addc_u32 s{base+1}, s{base+1}, 0")
            if base == 10:
                a("s_lshl_b32 s33, s32, 12"); a(f"s_add_u32 m0, s33, {WQB}")
                for i in range(4):
                    if i: a(f"v_add_u32 v{t0}, {64512*i}, v{vWQ}")
                    self.issue("wq", f"global_load_lds_dwordx4 v{t0 if i else vWQ}, s[10:11] offset:{1024*i}{NT}")
            if base == 16:
                a("s_lshl_b32 s33, s32, 11"); a(f"s_add_u32 m0, s33, {W1B}")
                a("s_cmp_lt_u32 s31, 28"); a("s_cselect_b32 exec_lo, -1, 1"); a("s_cselect_b32 exec_hi, -1, 0")
                for i in range(2):
                    if i: a(f"v_add_u32 v{t0}, {27648*i}, v{vW1}")
                    self.issue("w1", f"global_load_lds_dwordx4 v{t0 if i else vW1}, s[16:17] offset:{1024*i}{NT}")
                a("s_mov_b64 exec, -1")
            if base == 6:
                a("s_lshl_b32 s33, s32, 13"); a(f"s_add_u32 m0, s33, {KB}")
                for n in range(8):
                    if n == 4:
                        a("s_add_u32 s6, s6, 4096"); a("s_addc_u32 s7, s7, 0"); a("s_add_u32 m0, m0, 4096"); a("s_nop 0")
                    self.issue("K", f"global_load_lds_dwordx4 v{vK+n%4}, s[6:7] offset:{1024*(n%4)}{NT}")
        self.stamp("L1")
        if o["codepf"]:
            a("s_cmp_lg_u32 s31, 0"); a("s_cbranch_scc1 L_nopf"); a("s_cmp_lg_u32 s32, 3"); a("s_cbranch_scc1 L_nopf")
            a("s_getpc_b64 s[34:35]"); a(f"v_lshlrev_b32 v{t0}, 7, v{vl}")
            self.issue("pf", f"global_load_dword v{t1}, v{t0}, s[34:35]", sure=False)
            a.label("L_nopf")
        vr4 = v("r4"); vc4 = v("c4")
        a(f"v_lshrrev_b32 v{vr4}, 2, v{vj}")
        a(f"v_and_b32 v{vc4}, 3, v{vj}")
        vTq = v("Tq", 2); vTv = v("Tv", 2); vTo = v("To", 2); vKr = v("Kr", 4)
        a("s_and_b32 s33, s32, 1"); a("s_lshl_b32 s33, s33, 2")
        a(f"v_lshrrev_b32 v{t0}, 1, v{vc4}"); a(f"v_add_u32 v{t0}, s33, v{t0}")
        a(f"v_and_b32 v{t1}, 1, v{vb}"); a(f"v_lshlrev_b32 v{t1}, 1, v{t1}"); a(f"v_lshrrev_b32 v{t2}, 1, v{vr4}"); a(f"v_add_lshl_u32 v{t1}, v{t1}, v{t2}, 1")
        a(f"v_xor_b32 v{t0}, v{t0}, v{t1}"); a(f"v_lshlrev_b32 v{t0}, 4, v{t0}")
        a(f"v_and_b32 v{t1}, 1, v{vc4}"); a(f"v_lshl_or_b32 v{t3}, v{t1}, 3, v{t0}")
        a(f"v_lshl_add_u32 v{t2}, v{vb}, 2, v{vr4}")
        a(f"v_lshl_add_u32 v{t3}, v{t2}, 7, v{t3}")
        a("s_cmp_lt_u32 s32, 2"); a(f"s_cselect_b32 s33, 0, {W1B-WQB}"); a(f"s_add_u32 s33, s33, {WQB}")
        a(f"v_add_u32 v{vTq}, s33, v{t3}"); a(f"v_xor_b32 v{vTq+1}, 32, v{vTq}")
        a("s_lshl_b32 s33, s32, 2")
        a(f"v_lshrrev_b32 v{t0}, 1, v{vc4}"); a(f"v_add_u32 v{t0}, s33, v{t0}")
        a(f"v_and_b32 v{t3}, 7, v{t2}"); a(f"v_lshlrev_b32 v{t3}, 1, v{t3}"); a(f"v_xor_b32 v{t0}, v{t0}, v{t3}")
        a(f"v_lshlrev_b32 v{t0}, 4, v{t0}"); a(f"v_lshl_or_b32 v{t0}, v{t1}, 3, v{t0}")
        a(f"v_lshl_add_u32 v{vTv}, v{t2}, 8, v{t0}"); a(f"v_xor_b32 v{vTv+1}, 32, v{vTv}")
        a(f"v_add_u32 v{vTo}, {WOB}, v{vTv}"); a(f"v_add_u32 v{vTo+1}, {WOB}, v{vTv+1}")
        a(f"v_xor_b32 v{t0}, v{vj}, v{vb}"); a(f"v_lshlrev_b32 v{t0}, 4, v{t0}"); a(f"v_lshl_or_b32 v{t0}, v{vj}, 8, v{t0}")
        a("s_lshl_b32 s33, s32, 13"); a(f"v_add_u32 v{vKr}, s33, v{t0}")
        for c in range(1, 4): a(f"v_xor_b32 v{vKr+c}, {64*c}, v{vKr}")
        vXw = v("Xw"); vXr = v("Xr")
        a(f"v_lshrrev_b32 v{t0}, 2, v{vl}"); a(f"v_lshlrev_b32 v{t0}, 6, v{t0}")
        a(f"v_and_b32 v{t1}, 1, v{vl}"); a(f"v_lshl_or_b32 v{t0}, v{t1}, 5, v{t0}")
        a(f"v_bfe_u32 v{t1}, v{vl}, 1, 1"); a(f"v_lshl_or_b32 v{t0}, v{t1}, 3, v{t0}")
        a("s_lshl_b32 s33, s32, 10"); a(f"s_add_u32 s33, s33, {XN}"); a(f"v_add_u32 v{vXw}, s33, v{t0}")
        a("s_lshr_b32 s34, s31, 3"); a("s_lshl_b32 s34, s34, 8"); a("s_lshl_b32 s35, s30, 7"); a("s_cmp_lt_u32 s32, 2"); a("s_cselect_b32 s34, s34, s35")
        a("s_add_u32 s33, s33, s34"); a(f"v_lshl_add_u32 v{vXr}, v{vb}, 4, s33")
        vP1 = v("P1")
        a("s_lshl_b32 s33, s30, 13"); a("s_bfe_u32 s34, s31, 0x20001"); a("s_lshl_b32 s34, s34, 11"); a("s_add_u32 s33, s33, s34")
        a("s_lshr_b32 s34, s31, 3"); a("s_lshl_b32 s34, s34, 9"); a("s_add_u32 s33, s33, s34")
        a("s_and_b32 s34, s31, 1"); a("s_lshl_b32 s34, s34, 8"); a("s_add_u32 s33, s33, s34"); a(f"s_add_u32 s33, s33, {WS_Q1}")
        a("s_lshl_b32 s34, s31, 11"); a("s_lshl_b32 s35, s30, 8"); a("s_add_u32 s34, s34, s35"); a(f"s_add_u32 s34, s34, {WS_H1}")
        a("s_cmp_lt_u32 s32, 2"); a("s_cselect_b32 s33, s33, s34")
        a("s_and_b32 s34, s32, 1"); a("s_lshl_b32 s34, s34, 7"); a("s_add_u32 s33, s33, s34")
        a(f"v_lshl_add_u32 v{vP1}, v{vj}, 3, s33")
        vTagA, vTagB, vTagL = v("TagA"), v("TagB"), v("TagL")
        a("s_waitcnt lgkmcnt(0)")
        a("s_add_u32 s36, s36, 0x9E3779B9")
        a("s_lshr_b32 s37, s36, 8"); a("s_lshr_b32 s38, s36, 16"); a("s_lshr_b32 s39, s36, 24")
        a(f"v_and_b32 v{t0}, 1, v{vl}"); a(f"v_lshlrev_b32 v{t0}, 4, v{t0}")
        a(f"v_lshrrev_b32 v{vTagA}, v{t0}, s36"); a(f"v_lshrrev_b32 v{vTagB}, 8, v{vTagA}")
        a(f"v_and_b32 v{t0}, 3, v{vl}"); a(f"v_lshlrev_b32 v{t0}, 3, v{t0}"); a(f"v_lshrrev_b32 v{vTagL}, v{t0}, s36")
        vF = v("F", 8, 2)
        self.wait("x")
        self.stamp("x")
        for i in range(4):
            a(f"v_lshlrev_b32 v{vF+2*i}, 16, v{vX+i}"); a(f"v_and_b32 v{vF+2*i+1}, 0xffff0000, v{vX+i}")
        def wave_sum(r, sdst):
            for k in (8, 4, 2, 1): a(f"v_add_f32_dpp v{r}, v{r}, v{r} row_ror:{k} row_mask:0xf bank_mask:0xf")
            a(f"v_add_f32_dpp v{r}, v{r}, v{r} row_bcast:15 row_mask:0xa bank_mask:0xf")
            a(f"v_add_f32_dpp v{r}, v{r}, v{r} row_bcast:31 row_mask:0xc bank_mask:0xf")
            a(f"v_readlane_b32 {sdst}, v{r}, 63")
        a(f"v_add_f32 v{t0}, v{vF}, v{vF+1}"); a(f"v_add_f32 v{t1}, v{vF+2}, v{vF+3}"); a(f"v_add_f32 v{t2}, v{vF+4}, v{vF+5}"); a(f"v_add_f32 v{t3}, v{vF+6}, v{vF+7}")
        a(f"v_add_f32 v{t0}, v{t0}, v{t1}"); a(f"v_add_f32 v{t2}, v{t2}, v{t3}"); a(f"v_add_f32 v{t0}, v{t0}, v{t2}")
        wave_sum(t0, "s33")
        a(f"v_mul_f32 v{t1}, s33, v{self.const('inv512', 1/512.)}")
        vD = v("D", 8, 2)
        for i in range(8): a(f"v_sub_f32 v{vD+i}, v{vF+i}, v{t1}")
        a(f"v_mul_f32 v{t0}, v{vD}, v{vD}"); a(f"v_mul_f32 v{t2}, v{vD+1}, v{vD+1}")
        for i in range(2, 8): a(f"v_fmac_f32 v{t0 if i%2==0 else t2}, v{vD+i}, v{vD+i}")
        a(f"v_add_f32 v{t0}, v{t0}, v{t2}")
        a(f"v_cvt_pk_bf16_f32 v{t1}, v{t1}, v{t1}")
        wave_sum(t0, "s33")
        a(f"v_and_b32 v{t1}, 0xffff0000, v{t1}")
        for i in range(8): a(f"v_sub_f32 v{vD+i}, v{vF+i}, v{t1}")
        a(f"v_mul_f32 v{t0}, s33, v{self.names['c_inv512'][0]}")
        a(f"v_cvt_pk_bf16_f32 v{t0}, v{t0}, v{t0}"); a(f"v_and_b32 v{t0}, 0xffff0000, v{t0}")
        a(f"v_add_f32 v{t0}, 0x3727c5ac, v{t0}")
        a(f"v_cvt_pk_bf16_f32 v{t0}, v{t0}, v{t0}"); a(f"v_and_b32 v{t0}, 0xffff0000, v{t0}")
        a(f"v_sqrt_f32 v{t0}, v{t0}")
        for i in range(4): a(f"v_cvt_pk_bf16_f32 v{vX+i}, v{vD+2*i}, v{vD+2*i+1}")
        a(f"v_cvt_pk_bf16_f32 v{t0}, v{t0}, v{t0}"); a(f"v_and_b32 v{t0}, 0xffff0000, v{t0}")
        a(f"v_rcp_f32 v{t0}, v{t0}")
        for i in range(4):
            a(f"v_lshlrev_b32 v{vD+2*i}, 16, v{vX+i}"); a(f"v_and_b32 v{vD+2*i+1}, 0xffff0000, v{vX+i}")
        for i in range(8): a(f"v_mul_f32 v{vD+i}, v{vD+i}, v{t0}")
        for i in range(4): a(f"v_cvt_pk_bf16_f32 v{vX+i}, v{vD+2*i}, v{vD+2*i+1}")
        a(f"ds_write2_b64 v{vXw}, {vr(vX,2)}, {vr(vX+2,2)} offset0:0 offset1:2")
        vA = v("A", 16, 2)
        a("s_waitcnt lgkmcnt(0)")
        for n in range(4): a(f"ds_read_b128 {vr(vA+4*n,4)}, v{vXr} offset:{64*n}")
        self.stamp("LN")
        self.wait("wq", "w1")
        a("s_barrier")
        self.stamp("B1")
        vB = v("B", 32, 2); vAcc = v("Acc", 8, 2); vSt = v("St", 4, 2)
        def trs(dst, addr, off): a(f"ds_read_b64_tr_b16 {vr(dst,2)}, v{addr} offset:{off}")
        for n in range(2):
            for blk in range(2):
                for tt in range(2): trs(vB + 8*n + 4*blk + 2*tt, vTq + blk, n*4096 + tt*2048)
        a("s_cmp_ge_u32 s32, 2"); a("s_cbranch_scc1 L_h2")
        for n in range(2, 4):
            for blk in range(2):
                for tt in range(2): trs(vB + 8*n + 4*blk + 2*tt, vTq + blk, n*4096 + tt*2048)
        a("s_waitcnt lgkmcnt(8)")
        for n in range(2):
            for blk in range(2):
                a(f"v_mfma_f32_16x16x32_bf16 {vr(vAcc+4*blk,4)}, {vr(vA+4*n,4)}, {vr(vB+8*n+4*blk,4)}, {'0' if n==0 else vr(vAcc+4*blk,4)}")
        a("s_waitcnt lgkmcnt(0)")
        for n in range(2, 4):
            for blk in range(2):
                a(f"v_mfma_f32_16x16x32_bf16 {vr(vAcc+4*blk,4)}, {vr(vA+4*n,4)}, {vr(vB+8*n+4*blk,4)}, {vr(vAcc+4*blk,4)}")
        a("s_branch L_pub1")
        a.label("L_h2")
        a("s_waitcnt lgkmcnt(0)")
        for n in range(2):
            for blk in range(2):
                a(f"v_mfma_f32_16x16x32_bf16 {vr(vAcc+4*blk,4)}, {vr(vA+4*n,4)}, {vr(vB+8*n+4*blk,4)}, {'0' if n==0 else vr(vAcc+4*blk,4)}")
        a("s_cmp_ge_u32 s31, 28"); a("s_cbranch_scc1 L_nopub1")
        a.label("L_pub1")
        a("s_nop 7")
        a(f"v_bfi_b32 v{vSt}, s40, v{vTagA}, v{vAcc}"); a(f"v_bfi_b32 v{vSt+1}, s40, v{vTagB}, v{vAcc+4}")
        a("s_mov_b64 exec, 0xffff")
        self.issue("pub1", f"global_store_dwordx2 v{vP1}, {vr(vSt,2)}, s[28:29] sc1", sure=False)
        a("s_mov_b64 exec, -1")
        a.label("L_nopub1")
        self.stamp("pub1")
        def loadV(n):
            if n == 0:
                a("s_lshl_b32 s33, s32, 11"); a(f"s_add_u32 m0, s33, {VB}")
            else:
                a("s_add_u32 s8, s8, 8192"); a("s_addc_u32 s9, s9, 0"); a("s_add_u32 m0, m0, 8192")
            a("s_nop 0")
            for i in range(2):
                self.issue(f"V{n}", f"global_load_lds_dwordx4 v{vV+i}, s[8:9] offset:{1024*i}{NT}")
        loadV(0); loadV(1)
        vG1 = v("G1"); vQw = v("Qw"); vQr = v("Qr"); vMw = v("Mw"); vMr = v("Mr"); vPw = v("Pw")
        a("s_lshl_b32 s33, s30, 13"); a("s_lshl_b32 s34, s32, 11"); a("s_add_u32 s33, s33, s34"); a(f"s_add_u32 s33, s33, {WS_Q1}")
        a(f"v_add_u32 v{vG1}, s33, v{vl16}")
        a(f"v_bfe_u32 v{t0}, v{vl}, 3, 2"); a(f"v_lshlrev_b32 v{t0}, 6, v{t0}"); a(f"v_and_b32 v{t1}, 7, v{vl}"); a(f"v_lshl_or_b32 v{t0}, v{t1}, 2, v{t0}")
        a(f"v_lshrrev_b32 v{t1}, 5, v{vl}"); a(f"v_lshl_or_b32 v{t0}, v{t1}, 5, v{t0}")
        a("s_mul_i32 s33, s32, 320"); a(f"s_add_u32 s33, s33, {QL}"); a(f"v_add_u32 v{vQw}, s33, v{t0}")
        a(f"v_mul_u32_u24 v{t0}, 320, v{vr4}"); a(f"v_lshl_add_u32 v{t0}, v{vb}, 4, v{t0}"); a(f"v_add_u32 v{vQr}, {QL}, v{t0}")
        a(f"v_lshlrev_b32 v{t0}, 4, v{vr4}"); a(f"v_add_u32 v{vMr}, {MX}, v{t0}")
        a("s_lshl_b32 s33, s32, 2"); a(f"v_add_u32 v{vMw}, s33, v{vMr}")
        vPr = v("Pr")
        a(f"v_add_u32 v{vPr}, {PL}, v{vl16}")
        a("s_lshl_b32 s33, s32, 10"); a(f"v_add_u32 v{vPw}, s33, v{vPr}")
        vKo = v("Ko", 32, 2)
        self.wait("K")
        self.stamp("K")
        for t in range(2):
            for c in range(4): a(f"ds_read_b128 {vr(vKo+16*t+4*c,4)}, v{vKr+c} offset:{4096*t}")
        vG = v("G", 8, 2)
        def gq(track):
            for i in range(2):
                txt = f"global_load_dwordx4 {vr(vG+4*i,4)}, v{vG1}, s[28:29] offset:{1024*i} sc1"
                if track: self.issue("gq", txt)
                else: a(txt)
        gq(True)
        loadV(2); loadV(3)
        def loadW():
            a("s_lshl_b32 s33, s32, 12"); a(f"s_add_u32 m0, s33, {WOB}")
            for i in range(4):
                a(f"v_add_u32 v{t0}, {3072*i}, v{vWO+i%2}")
                self.issue("wo", f"global_load_lds_dwordx4 v{t0}, s[12:13] offset:{1024*i}{NT}")
            a("s_lshl_b32 s33, s32, 11"); a(f"s_add_u32 m0, s33, {W2B}")
            a("s_cmp_lt_u32 s41, 56"); a("s_cselect_b32 exec_lo, -1, 1"); a("s_cselect_b32 exec_hi, -1, 0")
            for i in range(2):
                a(f"v_add_u32 v{t0}, {3072*i}, v{vWO+i%2}")
                self.issue("w2", f"global_load_lds_dwordx4 v{t0}, s[20:21] offset:{1024*i}{NT}")
            a("s_mov_b64 exec, -1")
        if o["wo_pos"] == "early": loadW()
        a("s_mov_b32 s52, 0")
        self.wait("gq")
        a.label("L_chk1")
        a(f"v_xor_b32 v{t0}, s36, v{vG}")
        for i in range(1, 8): a(f"v_bitop3_b32 v{t0}, v{t0}, v{vG+i}, s{36+i%4} bitop3:0xf6")
        a(f"v_and_b32 v{t0}, s40, v{t0}")
        a(f"v_cmp_ne_u32 vcc, 0, v{t0}")
        a("s_cbranch_vccz L_ok1")
        a("s_add_u32 s52, s52, 1"); a(f"s_cmp_ge_u32 s52, {o['maxpoll']}"); a("s_cbranch_scc1 L_end")
        gq(False); a("s_waitcnt vmcnt(0)"); a("s_branch L_chk1")
        a.label("L_ok1")
        self.stamp("gq")
        for i in range(8): a(f"v_and_b32 v{vG+i}, 0xffffff00, v{vG+i}")
        for i in range(4): a(f"v_add_f32 v{vG+i}, v{vG+i}, v{vG+4+i}")
        a(f"v_permlane32_swap_b32 v{vG}, v{vG+1}"); a(f"v_permlane32_swap_b32 v{vG+2}, v{vG+3}")
        a(f"v_add_f32 v{t0}, v{vG}, v{vG+1}"); a(f"v_add_f32 v{t1}, v{vG+2}, v{vG+3}")
        a(f"v_cvt_pk_bf16_f32 v{t0}, v{t0}, v{t1}")
        a(f"ds_write_b32 v{vQw}, v{t0}")
        a("s_waitcnt lgkmcnt(0)")
        a("s_barrier")
        for c in range(4): a(f"ds_read_b128 {vr(vA+4*c,4)}, v{vQr} offset:{64*c}")
        self.stamp("B2")
        vS = v("S", 8, 2)
        for c in range(4):
            a(f"s_waitcnt lgkmcnt({3-c})")
            for t in range(2):
                a(f"v_mfma_f32_16x16x32_bf16 {vr(vS+4*t,4)}, {vr(vKo+16*t+4*c,4)}, {vr(vA+4*c,4)}, {'0' if c==0 else vr(vS+4*t,4)}")
        vU = v("U", 4, 2)
        cs = self.const("scale", 128 ** -0.5)
        for i in range(4): a(f"v_cvt_pk_bf16_f32 v{vU+i}, v{vS+2*i}, v{vS+2*i+1}")
        for i in range(4):
            a(f"v_lshlrev_b32 v{vS+2*i}, 16, v{vU+i}"); a(f"v_and_b32 v{vS+2*i+1}, 0xffff0000, v{vU+i}")
        for i in range(8): a(f"v_mul_f32 v{vS+i}, v{vS+i}, v{cs}")
        for i in range(4): a(f"v_cvt_pk_bf16_f32 v{vU+i}, v{vS+2*i}, v{vS+2*i+1}")
        for i in range(4):
            a(f"v_lshlrev_b32 v{vS+2*i}, 16, v{vU+i}"); a(f"v_and_b32 v{vS+2*i+1}, 0xffff0000, v{vU+i}")
        a(f"v_max3_f32 v{t0}, v{vS}, v{vS+1}, v{vS+2}"); a(f"v_max3_f32 v{t1}, v{vS+3}, v{vS+4}, v{vS+5}")
        a(f"v_max3_f32 v{t0}, v{t0}, v{vS+6}, v{vS+7}"); a(f"v_max_f32 v{t0}, v{t0}, v{t1}")
        a(f"v_mov_b32 v{t1}, v{t0}"); a(f"v_permlane16_swap_b32 v{t0}, v{t1}"); a(f"v_max_f32 v{t0}, v{t0}, v{t1}")
        a(f"v_mov_b32 v{t1}, v{t0}"); a(f"v_permlane32_swap_b32 v{t0}, v{t1}"); a(f"v_max_f32 v{t0}, v{t0}, v{t1}")
        a("s_mov_b64 exec, 0x1111")
        a(f"ds_write_b32 v{vMw}, v{t0}")
        a("s_mov_b64 exec, -1")
        a("s_waitcnt lgkmcnt(0)")
        a("s_barrier")
        a(f"ds_read_b128 {vr(vU,4)}, v{vMr}")
        self.stamp("B3")
        vM = v("M")
        cl2 = self.const("log2e", 1.4426950408889634)
        a("s_waitcnt lgkmcnt(0)")
        a(f"v_max3_f32 v{t0}, v{vU}, v{vU+1}, v{vU+2}"); a(f"v_max_f32 v{t0}, v{t0}, v{vU+3}")
        a(f"v_mul_f32 v{vM}, v{t0}, v{cl2}")
        for i in range(8): a(f"v_fma_f32 v{vS+i}, v{vS+i}, v{cl2}, -v{vM}")
        for i in range(8): a(f"v_exp_f32 v{vS+i}, v{vS+i}")
        for i in range(4): a(f"v_cvt_pk_bf16_f32 v{vU+i}, v{vS+2*i}, v{vS+2*i+1}")
        a(f"ds_write_b128 v{vPw}, {vr(vU,4)}")
        a("s_waitcnt lgkmcnt(0)")
        a("s_barrier")
        for n in range(4): a(f"ds_read_b128 {vr(vA+4*n,4)}, v{vPr} offset:{1024*n}")
        self.stamp("B4")
        def pv_reads(n):
            for blk in range(2):
                for tt in range(2): trs(vB + 8*n + 4*blk + 2*tt, vTv + blk, VB + n*8192 + tt*4096)
        def pv_mfma(n):
            for blk in range(2):
                a(f"v_mfma_f32_16x16x32_bf16 {vr(vAcc+4*blk,4)}, {vr(vA+4*n,4)}, {vr(vB+8*n+4*blk,4)}, {'0' if n==0 else vr(vAcc+4*blk,4)}")
        pv_reads(0); pv_reads(1)
        a("s_cmp_lg_u32 s32, 0"); a("s_cbranch_scc1 L_noml")
        one = self.const_bf16_ones()
        a("s_waitcnt lgkmcnt(8)")
        for n in range(4):
            a(f"v_mfma_f32_16x16x32_bf16 {vr(vS,4)}, {vr(one,4)}, {vr(vA+4*n,4)}, {'0' if n==0 else vr(vS,4)}")
        a("s_lshl_b32 s33, s30, 5"); a("s_add_u32 s33, s33, s31"); a("s_lshl_b32 s33, s33, 6"); a(f"s_add_u32 s33, s33, {WS_ML}")
        a(f"v_lshl_add_u32 v{t1}, v{vj}, 2, s33")
        a(f"v_mov_b32 v{t0}, s36")
        a("s_mov_b64 s[34:35], 0x2222"); a("s_mov_b64 vcc, 0x1111")
        a(f"v_cndmask_b32 v{t0}, v{t0}, v{vS}, s[34:35]")
        a(f"v_cndmask_b32 v{t0}, v{t0}, v{vM}, vcc")
        a("s_mov_b64 exec, 0xffff")
        self.issue("pubml", f"global_store_dword v{t1}, v{t0}, s[28:29] sc1", sure=False)
        a("s_mov_b64 exec, -1")
        a.label("L_noml")
        a("s_waitcnt lgkmcnt(0)")
        pv_mfma(0); pv_mfma(1)
        if o["wo_pos"] == "mid": loadW()
        vP2 = v("P2"); vG2 = v("G2"); vGml = v("Gml"); vGh = v("Gh"); vAw = v("Aw"); vGw = v("Gw"); vAr = v("Ar"); vP3 = v("P3"); vG3 = v("G3")
        a("s_lshl_b32 s33, s30, 16"); a("s_lshl_b32 s34, s31, 8"); a("s_add_u32 s33, s33, s34")
        a("s_lshr_b32 s34, s32, 1"); a("s_lshl_b32 s34, s34, 13"); a("s_add_u32 s33, s33, s34")
        a("s_and_b32 s34, s32, 1"); a("s_lshl_b32 s34, s34, 7"); a("s_add_u32 s33, s33, s34"); a(f"s_add_u32 s33, s33, {WS_O2}")
        a(f"v_lshlrev_b32 v{t0}, 14, v{vb}"); a(f"v_lshl_or_b32 v{t0}, v{vj}, 3, v{t0}"); a(f"v_add_u32 v{vP2}, s33, v{t0}")
        a("s_lshl_b32 s33, s41, 13"); a("s_lshl_b32 s34, s32, 6"); a("s_add_u32 s33, s33, s34"); a(f"s_add_u32 s33, s33, {WS_O2}")
        a(f"v_lshlrev_b32 v{t0}, 11, v{vb}"); a(f"v_lshl_or_b32 v{t0}, v{vj}, 2, v{t0}"); a(f"v_add_u32 v{vG2}, s33, v{t0}")
        a("s_lshl_b32 s33, s30, 11"); a("s_lshr_b32 s34, s31, 3"); a("s_lshl_b32 s34, s34, 4"); a("s_add_u32 s33, s33, s34"); a(f"s_add_u32 s33, s33, {WS_ML}")
        a(f"v_and_b32 v{t0}, 7, v{vj}"); a(f"v_lshl_add_u32 v{t0}, v{vb}, 3, v{t0}"); a(f"v_lshl_add_u32 v{vGml}, v{t0}, 6, s33")
        a("s_lshr_b32 s33, s43, 1"); a("s_lshl_b32 s33, s33, 11"); a("s_and_b32 s34, s43, 1"); a("s_lshl_b32 s34, s34, 7"); a("s_add_u32 s33, s33, s34")
        a("s_lshl_b32 s34, s32, 5"); a("s_add_u32 s33, s33, s34"); a(f"s_add_u32 s33, s33, {WS_H1}")
        a(f"v_lshrrev_b32 v{t0}, 3, v{vl}"); a(f"v_lshlrev_b32 v{t0}, 8, v{t0}"); a(f"v_and_b32 v{t1}, 7, v{vl}"); a(f"v_lshl_or_b32 v{t0}, v{t1}, 2, v{t0}")
        a(f"v_add_u32 v{vGh}, s33, v{t0}")
        a("s_lshr_b32 s33, s32, 1"); a("s_lshl_b32 s33, s33, 6"); a("s_and_b32 s34, s32, 1"); a("s_lshl_b32 s34, s34, 5"); a("s_add_u32 s33, s33, s34"); a(f"s_add_u32 s33, s33, {AL}")
        a(f"v_lshrrev_b32 v{t0}, 3, v{vj}"); a(f"v_lshlrev_b32 v{t0}, 4, v{t0}"); a(f"v_and_b32 v{t1}, 1, v{vj}"); a(f"v_lshl_or_b32 v{t0}, v{t1}, 3, v{t0}")
        a(f"v_bfe_u32 v{t2}, v{vj}, 1, 2"); a(f"v_lshl_or_b32 v{t0}, v{t2}, 1, v{t0}"); a(f"v_add_u32 v{vAw}, s33, v{t0}")
        a(f"v_lshlrev_b32 v{t0}, 3, v{t1}"); a(f"v_lshl_or_b32 v{t0}, v{t2}, 1, v{t0}")
        a("s_lshl_b32 s33, s32, 4"); a(f"s_add_u32 s33, s33, {AL+128}"); a(f"v_add_u32 v{vGw}, s33, v{t0}")
        a(f"v_lshlrev_b32 v{t0}, 4, v{vb}"); a(f"v_add_u32 v{vAr}, {AL}, v{t0}")
        a("s_lshl_b32 s33, s41, 11"); a("s_lshl_b32 s34, s42, 9"); a("s_add_u32 s33, s33, s34"); a("s_lshl_b32 s34, s32, 7"); a("s_add_u32 s33, s33, s34"); a(f"s_add_u32 s33, s33, {WS_O3}")
        a(f"v_lshl_add_u32 v{vP3}, v{vj}, 3, s33")
        a("s_lshl_b32 s33, s50, 7"); a("s_lshl_b32 s34, s51, 4"); a("s_add_u32 s33, s33, s34"); a(f"s_add_u32 s33, s33, {WS_O3}")
        a(f"v_lshl_add_u32 v{vG3}, v{vl}, 11, s33")
        self.wait("V3")
        a("s_barrier")
        self.stamp("V")
        pv_reads(2); pv_reads(3)
        a("s_waitcnt lgkmcnt(4)"); pv_mfma(2)
        a("s_waitcnt lgkmcnt(0)"); pv_mfma(3)
        a(f"v_bfi_b32 v{vSt}, s40, v{vTagA}, v{vAcc}"); a(f"v_bfi_b32 v{vSt+1}, s40, v{vTagB}, v{vAcc+4}")
        self.issue("pub2", f"global_store_dwordx2 v{vP2}, {vr(vSt,2)}, s[28:29] sc1")
        self.stamp("pub2")
        if o["wo_pos"] == "late": loadW()
        vML = v("ML", 4, 2); vH = v("H")
        a("s_mov_b32 s52, 0")
        a.label("L_poll_ml")
        a(f"global_load_dwordx4 {vr(vML,4)}, v{vGml}, s[28:29] sc1")
        a(f"global_load_dword v{vH}, v{vGh}, s[28:29] sc1")
        a("s_waitcnt vmcnt(0)"); self.vm = []
        a(f"v_xor_b32 v{t0}, v{vTagL}, v{vH}"); a(f"v_and_b32 v{t0}, s40, v{t0}")
        a(f"v_bitop3_b32 v{t0}, v{t0}, v{vML+2}, s36 bitop3:0xf6")
        a(f"v_cmp_ne_u32 vcc, 0, v{t0}")
        a("s_cbranch_vccz L_ok_ml")
        a("s_add_u32 s52, s52, 1"); a(f"s_cmp_ge_u32 s52, {o['maxpoll']}"); a("s_cbranch_scc1 L_end")
        a(f"s_sleep {o['sleep2']}")
        a("s_branch L_poll_ml")
        a.label("L_ok_ml")
        self.stamp("ml")
        a("s_barrier")
        for n in range(3):
            for blk in range(2):
                for tt in range(2): trs(vB + 8*n + 4*blk + 2*tt, vTo + blk, n*8192 + tt*4096)
        vO = v("O", 8, 2)
        def go():
            for n in range(8): a(f"global_load_dword v{vO+n}, v{vG2}, s[28:29] offset:{256*n} sc1")
        go()
        vW = v("W")
        a(f"v_max_f32_dpp v{t0}, v{vML}, v{vML} row_ror:1 row_mask:0xf bank_mask:0xf")
        a(f"v_and_b32 v{vH}, 0xffffff00, v{vH}")
        a(f"v_max_f32_dpp v{t0}, v{t0}, v{t0} row_ror:2 row_mask:0xf bank_mask:0xf")
        a(f"v_add_f32_dpp v{vH}, v{vH}, v{vH} row_ror:8 row_mask:0xf bank_mask:0xf")
        a(f"v_max_f32_dpp v{t0}, v{t0}, v{t0} row_ror:4 row_mask:0xf bank_mask:0xf")
        a(f"v_mov_b32 v{t3}, v{vH}")
        a(f"v_mov_b32 v{t1}, v{t0}")
        a(f"v_permlane16_swap_b32 v{vH}, v{t3}"); a(f"v_permlane16_swap_b32 v{t0}, v{t1}")
        a(f"v_add_f32 v{vH}, v{vH}, v{t3}"); a(f"v_max_f32 v{t0}, v{t0}, v{t1}")
        a(f"v_mov_b32 v{t3}, v{vH}"); a(f"v_mov_b32 v{t1}, v{t0}")
        a(f"v_permlane32_swap_b32 v{vH}, v{t3}"); a(f"v_permlane32_swap_b32 v{t0}, v{t1}")
        a(f"v_add_f32 v{vH}, v{vH}, v{t3}"); a(f"v_max_f32 v{t0}, v{t0}, v{t1}")
        a(f"v_sub_f32 v{t0}, v{vML}, v{t0}"); a(f"v_exp_f32 v{vW}, v{t0}")
        a(f"v_cvt_pk_bf16_f32 v{vH}, v{vH}, v{vH}"); a(f"v_and_b32 v{vH}, 0xffff0000, v{vH}")
        a(f"v_mul_f32 v{t0}, v{vW}, v{vML+1}")
        a(f"v_lshlrev_b32 v{vb1}, 16, v{vb1}"); a(f"v_add_f32 v{vH}, v{vH}, v{vb1}")
        a(f"v_add_f32_dpp v{t0}, v{t0}, v{t0} row_ror:1 row_mask:0xf bank_mask:0xf")
        a(f"v_cvt_pk_bf16_f32 v{vH}, v{vH}, v{vH}"); a(f"v_and_b32 v{vH}, 0xffff0000, v{vH}")
        a(f"v_add_f32_dpp v{t0}, v{t0}, v{t0} row_ror:2 row_mask:0xf bank_mask:0xf")
        a(f"v_mul_f32 v{t2}, v{vH}, v{vH}")
        cg1 = self.const("g1", -2 * 0.7978845608028654 * 1.4426950408889634)
        cg2 = self.const("g2", -2 * 0.7978845608028654 * 1.4426950408889634 * 0.044715)
        a(f"v_add_f32_dpp v{t0}, v{t0}, v{t0} row_ror:4 row_mask:0xf bank_mask:0xf")
        a(f"v_fma_f32 v{t2}, v{t2}, v{cg2}, v{cg1}"); a(f"v_mul_f32 v{t2}, v{t2}, v{vH}")
        a(f"v_mov_b32 v{t1}, v{t0}"); a(f"v_exp_f32 v{t2}, v{t2}")
        a(f"v_permlane16_swap_b32 v{t0}, v{t1}"); a(f"v_add_f32 v{t0}, v{t0}, v{t1}")
        a(f"v_add_f32 v{t2}, 1.0, v{t2}")
        a(f"v_mov_b32 v{t1}, v{t0}"); a(f"v_rcp_f32 v{t2}, v{t2}")
        a(f"v_permlane32_swap_b32 v{t0}, v{t1}"); a(f"v_add_f32 v{t0}, v{t0}, v{t1}")
        a(f"v_mul_f32 v{vH}, v{vH}, v{t2}"); a(f"v_rcp_f32 v{t0}, v{t0}")
        a(f"v_cvt_pk_bf16_f32 v{vH}, v{vH}, v{vH}")
        a("s_mov_b64 exec, 0xff")
        a(f"ds_write_b16 v{vGw}, v{vH}")
        a("s_mov_b64 exec, -1")
        a(f"v_mul_f32 v{vW}, v{vW}, v{t0}")
        a("s_mov_b32 s52, 0")
        a.label("L_chk2")
        a("s_waitcnt vmcnt(0)")
        a(f"v_xor_b32 v{t0}, v{vTagL}, v{vO}")
        for i in range(1, 8): a(f"v_bitop3_b32 v{t0}, v{t0}, v{vO+i}, v{vTagL} bitop3:0xf6")
        a(f"v_and_b32 v{t0}, s40, v{t0}")
        a(f"v_cmp_ne_u32 vcc, 0, v{t0}")
        a("s_cbranch_vccz L_ok2")
        a("s_add_u32 s52, s52, 1"); a(f"s_cmp_ge_u32 s52, {o['maxpoll']}"); a("s_cbranch_scc1 L_end")
        if o["sleep2"]: a(f"s_sleep {o['sleep2']}")
        go(); a("s_branch L_chk2")
        a.label("L_ok2")
        self.stamp("g2")
        for i in range(8): a(f"v_and_b32 v{vO+i}, 0xffffff00, v{vO+i}")
        a(f"v_mul_f32_dpp v{t0}, v{vW}, v{vO} row_newbcast:0 row_mask:0xf bank_mask:0xf")
        a(f"v_mul_f32_dpp v{t2}, v{vW}, v{vO+1} row_newbcast:1 row_mask:0xf bank_mask:0xf")
        for n in range(2, 8): a(f"v_fmac_f32_dpp v{t0 if n%2==0 else t2}, v{vW}, v{vO+n} row_newbcast:{n} row_mask:0xf bank_mask:0xf")
        a(f"v_add_f32 v{t0}, v{t0}, v{t2}")
        a(f"v_mov_b32 v{t1}, v{t0}"); a(f"v_permlane16_swap_b32 v{t0}, v{t1}"); a(f"v_add_f32 v{t0}, v{t0}, v{t1}")
        a(f"v_mov_b32 v{t1}, v{t0}"); a(f"v_permlane32_swap_b32 v{t0}, v{t1}"); a(f"v_add_f32 v{t0}, v{t0}, v{t1}")
        a(f"v_cvt_pk_bf16_f32 v{t0}, v{t0}, v{t0}")
        a("s_mov_b64 exec, 0xffff")
        a(f"ds_write_b16 v{vAw}, v{t0}")
        a("s_mov_b64 exec, -1")
        a("s_waitcnt lgkmcnt(0)")
        a("s_barrier")
        for n in range(3): a(f"ds_read_b128 {vr(vA+4*n,4)}, v{vAr} offset:{64*n}")
        self.stamp("B7")
        a("s_waitcnt lgkmcnt(1)")
        for n in range(2):
            for blk in range(2):
                a(f"v_mfma_f32_16x16x32_bf16 {vr(vAcc+4*blk,4)}, {vr(vA+4*n,4)}, {vr(vB+8*n+4*blk,4)}, {'0' if n==0 else vr(vAcc+4*blk,4)}")
        a("s_waitcnt lgkmcnt(0)")
        a("s_cmp_ge_u32 s41, 56"); a("s_cbranch_scc1 L_nomlp")
        for blk in range(2):
            a(f"v_mfma_f32_16x16x32_bf16 {vr(vAcc+4*blk,4)}, {vr(vA+8,4)}, {vr(vB+16+4*blk,4)}, {vr(vAcc+4*blk,4)}")
        a.label("L_nomlp")
        a("s_nop 7")
        a(f"v_bfi_b32 v{vSt}, s40, v{vTagA}, v{vAcc}"); a(f"v_bfi_b32 v{vSt+1}, s40, v{vTagB}, v{vAcc+4}")
        a("s_mov_b64 exec, 0xffff")
        a(f"global_store_dwordx2 v{vP3}, {vr(vSt,2)}, s[28:29] sc1")
        a("s_mov_b64 exec, -1")
        self.stamp("pub3")
        a("s_and_b32 s33, s31, 1"); a("s_or_b32 s33, s33, s32"); a("s_cmp_lg_u32 s33, 0"); a("s_cbranch_scc1 L_fin")
        a(f"v_lshlrev_b32 v{vxf}, 16, v{vxf}"); a(f"v_lshlrev_b32 v{vb2}, 16, v{vb2}"); a(f"v_add_f32 v{vxf}, v{vxf}, v{vb2}")
        a("s_mov_b32 s52, 0")
        a.label("L_poll3")
        a(f"global_load_dwordx4 {vr(vG,4)}, v{vG3}, s[28:29] sc1")
        a("s_waitcnt vmcnt(0)")
        a(f"v_xor_b32 v{t0}, s36, v{vG}")
        for i in range(1, 4): a(f"v_bitop3_b32 v{t0}, v{t0}, v{vG+i}, s{36+i} bitop3:0xf6")
        a(f"v_and_b32 v{t0}, s40, v{t0}")
        a(f"v_cmp_ne_u32 vcc, 0, v{t0}")
        a("s_cbranch_vccz L_ok3")
        a("s_add_u32 s52, s52, 1"); a(f"s_cmp_ge_u32 s52, {o['maxpoll']}"); a("s_cbranch_scc1 L_end")
        if o["sleep3"]: a(f"s_sleep {o['sleep3']}")
        a("s_branch L_poll3")
        a.label("L_ok3")
        self.stamp("g3")
        for i in range(4): a(f"v_and_b32 v{vG+i}, 0xffffff00, v{vG+i}")
        a(f"v_permlane32_swap_b32 v{vG}, v{vG+1}"); a(f"v_permlane32_swap_b32 v{vG+2}, v{vG+3}")
        a(f"v_add_f32 v{t0}, v{vG}, v{vG+1}"); a(f"v_add_f32 v{t1}, v{vG+2}, v{vG+3}")
        a(f"v_permlane16_swap_b32 v{t0}, v{t1}"); a(f"v_add_f32 v{t0}, v{t0}, v{t1}")
        for k in (8, 4, 2, 1): a(f"v_add_f32_dpp v{t0}, v{t0}, v{t0} row_ror:{k} row_mask:0xf bank_mask:0xf")
        a(f"v_add_f32 v{t0}, v{t0}, v{vxf}")
        a(f"v_cvt_pk_bf16_f32 v{t0}, v{t0}, v{t0}")
        a("s_mov_b32 exec_lo, 0x10001"); a("s_mov_b32 exec_hi, 0x10001")
        a(f"global_store_short v{vcol}, v{t0}, s[24:25]{' sc1' if o['out_sc1'] else ''}")
        a("s_cmp_lg_u32 s2, 0"); a("s_cbranch_scc1 L_fin")
        a("s_mov_b64 exec, 1")
        a(f"v_mov_b32 v{t1}, 0"); a(f"v_mov_b32 v{t2}, s36")
        a(f"global_store_dword v{t1}, v{t2}, s[28:29] sc1")
        a.label("L_fin")
        if o.get("pad"):
            if o.get("padg") is not None:
                a(f"s_cmp_lg_u32 s30, {o['padg']}"); a("s_cbranch_scc1 L_end")
            a("s_waitcnt lgkmcnt(0)")
            a(f"s_add_u32 s53, s56, {o['pad']}")
            a.label("L_pad")
            a("s_sleep 1")
            a("s_memrealtime s[54:55]"); a("s_waitcnt lgkmcnt(0)")
            a("s_sub_u32 s33, s54, s53"); a("s_cmp_lt_i32 s33, 0"); a("s_cbranch_scc1 L_pad")
        if o["stamps"]:
            a("s_mov_b64 exec, -1")
            self.stamp("end")
            a("s_memrealtime s[58:59]")
            a("s_getreg_b32 s55, hwreg(HW_REG_XCC_ID)")
            a("s_waitcnt lgkmcnt(0)")
            a("s_lshl_b32 s33, s2, 2"); a("s_add_u32 s33, s33, s32"); a("s_lshl_b32 s33, s33, 7"); a(f"s_add_u32 s33, s33, {WS_STAMP}")
            a(f"v_mov_b32 v{t1}, s33")
            regs = [56, 58, 55, 52] + [60 + 2*i for i in range(self.nstamp)]
            for i, r in enumerate(regs):
                a(f"v_mov_b32 v{t2}, s{r}"); a(f"global_store_dword v{t1}, v{t2}, s[28:29] offset:{4*i}")
        a.label("L_end")
        a("s_endpgm")
        return self.finish()
    def const(self, name, val):
        import struct
        r = self.v("c_" + name)
        self.consts = getattr(self, "consts", [])
        self.consts.append(f"v_mov_b32 v{r}, {hex(struct.unpack('<I', struct.pack('<f', val))[0])}")
        return r
    def const_bf16_ones(self):
        r = self.v("ones", 4, 2)
        self.consts = getattr(self, "consts", [])
        for i in range(4): self.consts.append(f"v_mov_b32 v{r+i}, 0x3f803f80")
        return r
    def finish(self):
        lines = self.a.lines
        k = next(i for i, l in enumerate(lines) if "s_add_u32 s36, s36, 0x9E3779B9" in l)
        lines[k:k] = ["    " + c for c in self.consts]
        text = "\n".join(lines) + "\n"
        text, n = hazard.fix(text)
        nv = (self.nv + 7) // 8 * 8
        out = kernel_file([(NAME + "_kernel", text, nv, 102, nv)], [(NAME + "_kernel", (256, 1, 1), (256, 1, 1), LDS_BYTES)])
        if self.o["stamps"]: out += "; stamps: " + ",".join(self.stamp_names) + "\n"
        return out

if __name__ == "__main__":
    import ast
    opts = {}
    for kv in sys.argv[1:]:
        k, val = kv.split("=")
        try: val = ast.literal_eval(val)
        except Exception: pass
        opts[k] = val
    print(Gen(**opts).build())
```
